```python
import torch

def _softmax(x, axis=-1):
    return torch.softmax(x, dim=axis)
def _gelu(x):
    return torch.nn.functional.gelu(x, approximate="tanh")
def _silu(x):
    return torch.nn.functional.silu(x)
def _sigmoid(x):
    return torch.sigmoid(x)
def _layernorm(x, axis=-1, eps=1e-5):
    m = x.mean(dim=axis, keepdim=True)
    v = x.var(dim=axis, keepdim=True, unbiased=False)
    return (x - m) / torch.sqrt(v + eps)
def _scatter_add(tgt, idx, src, axis=0):
    return tgt.clone().index_add_(axis, idx, src)
def _segment_sum(src, seg, n):
    out = torch.zeros((n,) + src.shape[1:], dtype=src.dtype)
    return out.index_add_(0, seg, src)
def _pad(x, pw):
    flat = tuple(v for pair in reversed(pw) for v in pair)
    return torch.nn.functional.pad(x, flat)

kernel_name = 'standalone__fft_conv__vision'

def setup_inputs():

    _w = (lambda a: (lambda t: t.to(torch.bfloat16) if t.is_floating_point() else t)(torch.as_tensor(a)))
    H = W = 224
    C = 96
    K = 3
    return {
        "x": _w((lambda *s: torch.randn(*s, dtype=torch.bfloat16) * 0.05)(1, H, W, C)),
        "w": _w((lambda *s: torch.randn(*s, dtype=torch.bfloat16) * 0.05)(K, K, C, C)),
    }

def reference(x, w):
    B, H, W, C = x.shape
    K = w.shape[0]
    wp = _pad(w, ((0, H - K), (0, W - K), (0, 0), (0, 0)))
    Xf = (lambda x, axes=(-2,-1): torch.fft.rfft2(x.float(), dim=axes))(x, axes=(1, 2))
    Wf = (lambda x, axes=(-2,-1): torch.fft.rfft2(x.float(), dim=axes))(wp, axes=(0, 1))
    Yf = torch.einsum('bhwi,hwio->bhwo', Xf, Wf)
    y = (lambda x, s, axes=(-2,-1): torch.fft.irfft2(x, s=s, dim=axes).to(torch.bfloat16))(Yf, (H, W), axes=(1, 2))
    return y
```

```python
import sys
opts = dict(P1=3, STAMP=0, NT=0, XPRE=6, name='standalone__fft_conv__vision')
for a in sys.argv[2:]:
    k, v = a.split('=')
    opts[k] = int(v) if v.lstrip('-').isdigit() else v
P1 = opts['P1']; STAMP = opts['STAMP']
L = []
def e(s): L.append('    ' + s)
def lab(s): L.append(s + ':')
XROW = 3456; XB = 0; WB = 16 * XROW; NSLOT = 8
LDS = WB + NSLOT * 12288
vXA = [1, 2, 3]; vWA = [4, 5, 6]; vWB_ = [7, 8, 9]; vGX = 10; vGW = [11, 12, 13]; vOUT = 14
T = [16, 17, 18, 19, 20, 21, 22, 23]
ACC = 24
NACC = P1 + 1
XR = ACC + 12 * NACC
NXR = 3 * P1
CV = XR + 4 * NXR
WV = CV + 16
VEND = WV + 72
assert VEND <= 256
def wreg(s, t):
    if s < 21: return ('a', (s * 3 + t) * 4)
    return ('v', WV + ((s - 21) * 3 + t) * 4)
def rr(k, b, n): return f'{k}[{b}:{b+n-1}]'
sX = 8; sW = 12; sO = 16; sDBG = 20
sROW = 24
sXM = 40; sWM = 41; sOB = 42; sTMP = 43; sW4 = 44; sT2 = 45; sT3 = 46
sST = 48
nst = [0]
def stamp():
    if STAMP:
        e(f's_memtime s[{sST+2*nst[0]}:{sST+2*nst[0]+1}]'); nst[0] += 1

e('s_cmp_ge_u32 s2, 224')
e('s_cbranch_scc1 L_end')
e('s_load_dwordx4 s[4:7], s[0:1], 0')
e('s_load_dwordx4 s[16:19], s[0:1], 16')
stamp()
e('v_lshrrev_b32 v15, 6, v0')
e('v_and_b32 v0, 63, v0')
e('v_readfirstlane_b32 s3, v15')
e('s_and_b32 s43, s2, 7')
e('s_mul_i32 s43, s43, 28')
e('s_lshr_b32 s45, s2, 3')
e('s_add_u32 s43, s43, s45')
e('s_mul_i32 s45, s43, 4682')
e('s_lshr_b32 s45, s45, 16')
e('s_mul_i32 s46, s45, 14')
e('s_sub_u32 s43, s43, s46')
e('s_lshl_b32 s47, s43, 4')
e(f's_add_u32 s45, s46, 222')
e(f's_cmp_ge_u32 s45, 224')
e(f's_cselect_b32 s44, 224, 0')
e(f's_sub_u32 s45, s45, s44')
e(f's_mul_i32 s{sROW}, s45, 43008')
e(f's_add_u32 s{sROW+1}, s{sROW}, 43008')
e(f's_mul_i32 s{sROW+2}, s46, 43008')
for r in range(3, 16): e(f's_add_u32 s{sROW+r}, s{sROW+r-1}, 43008')
e('s_lshl_b32 s44, s3, 6')
e('s_min_u32 s44, s44, 152')
e(f's_lshl_b32 s{sXM}, s44, 4')
e('v_add_u32 v16, s44, v0')
e('v_mul_u32_u24 v17, 0x1556, v16')
e('v_lshrrev_b32 v17, 16, v17')
e('v_mul_u32_u24 v18, 12, v17')
e('v_sub_u32 v18, v16, v18')
e('v_lshrrev_b32 v19, 1, v17')
e('v_and_b32 v19, 2, v19')
e('v_xor_b32 v18, v18, v19')
e('s_add_u32 s44, s47, 222')
e('v_add_u32 v17, s44, v17')
e('v_subrev_u32 v19, 224, v17')
e('v_min_u32 v17, v17, v19')
e('v_mul_u32_u24 v17, 192, v17')
e(f'v_lshl_add_u32 v{vGX}, v18, 4, v17')
e('s_mul_i32 s44, s3, 3072')
e(f's_add_u32 s{sWM}, s44, {WB}')
e(f'v_lshlrev_b32 v16, 4, v0')
e(f'v_add_u32 v{vGW[0]}, s44, v16')
e(f'v_xor_b32 v{vGW[2]}, 32, v{vGW[0]}')
e(f'v_and_b32 v17, 32, v0')
e(f'v_xor_b32 v{vGW[1]}, v17, v{vGW[0]}')
e('s_waitcnt lgkmcnt(0)')
e(f's_mov_b32 s{sX}, s4'); e(f's_and_b32 s{sX+1}, s5, 0xffff'); e(f's_mov_b32 s{sX+2}, 9633792'); e(f's_mov_b32 s{sX+3}, 0x20000')
e(f's_mov_b32 s{sW}, s6'); e(f's_and_b32 s{sW+1}, s7, 0xffff'); e(f's_mov_b32 s{sW+2}, 165888'); e(f's_mov_b32 s{sW+3}, 0x20000')
if STAMP:
    e(f's_mov_b32 s{sDBG}, s18'); e(f's_and_b32 s{sDBG+1}, s19, 0xffff'); e(f's_mov_b32 s{sDBG+2}, 256'); e(f's_mov_b32 s{sDBG+3}, 0x20000')
e(f's_and_b32 s{sO+1}, s17, 0xffff'); e(f's_mov_b32 s{sO+2}, 9633792'); e(f's_mov_b32 s{sO+3}, 0x20000')

vm = []
def dmaW(r):
    out = []
    out.append(f's_add_u32 m0, s{sWM}, {(r % NSLOT) * 12288}')
    out.append(f's_mov_b32 s{sW4}, {r * 12288}')
    for i in range(3):
        out.append(('vm', ('W', r), f'buffer_load_dwordx4 v{vGW[i]}, s[{sW}:{sW+3}], s{sW4} offen offset:{1024*i} lds'))
    return out
def dmaX(rho):
    return [f's_add_u32 m0, s{sXM}, {XB + rho * XROW}', 's_nop 0',
            ('vm', ('X', rho), f'buffer_load_dwordx4 v{vGX}, s[{sX}:{sX+3}], s{sROW+rho} offen lds')]
def emit(i):
    if isinstance(i, tuple):
        vm.append(i[1]); e(i[2])
    else: e(i)
def vmwait(tags):
    idx = max(k for k, t in enumerate(vm) if t in tags)
    n = len(vm) - 1 - idx
    assert n < 64
    e(f's_waitcnt vmcnt({n})')
first_rows = list(range(15, 15 - 2 * P1, -1))
pro = dmaW(0)
for r in first_rows: pro += dmaX(r)
nx = 15 - 2 * P1
pro += dmaW(1) + dmaW(2) + dmaX(nx) + dmaW(3) + dmaW(4) + dmaW(5) + dmaX(nx - 1) + dmaW(6) + dmaW(7)
nx -= 2
for i in pro[:8]: emit(i)
e('v_and_b32 v16, 15, v0')
e('v_lshrrev_b32 v17, 4, v0')
e('s_lshr_b32 s44, s3, 1')
e('s_and_b32 s45, s3, 1')
e(f's_xor_b32 s43, s44, 1')
e(f's_mul_i32 s43, s43, {XROW}')
for kw in range(3):
    e(f'v_add_u32 v18, {2-kw}, v16')
    e('v_lshrrev_b32 v19, 1, v18')
    e('v_and_b32 v19, 2, v19')
    e('v_xor_b32 v19, v19, v17')
    e('v_mul_u32_u24 v18, 192, v18')
    e('v_lshl_add_u32 v18, v19, 4, v18')
    e(f'v_add_u32 v{vXA[kw]}, s43, v18')
e('v_lshrrev_b32 v18, 2, v16')
e('v_lshl_add_u32 v18, v17, 3, v18')
e('v_mul_u32_u24 v18, 192, v18')
e(f'v_add_u32 v18, {WB}, v18')
e('v_and_b32 v19, 3, v0')
e('v_mul_u32_u24 v19, 24, v19')
e('s_mul_i32 s43, s45, 96')
e('v_add_u32 v19, s43, v19')
e('v_and_b32 v20, 1, v17')
e('v_lshlrev_b32 v20, 5, v20')
for t in range(3):
    e(f'v_add_u32 v21, {8*t}, v19')
    e('v_xor_b32 v21, v21, v20')
    e(f'v_add_u32 v{vWA[t]}, v21, v18')
    e(f'v_add_u32 v{vWB_[t]}, 61440, v{vWA[t]}')
e('v_mul_u32_u24 v18, 192, v16')
e('v_mul_u32_u24 v19, 24, v17')
e(f'v_add3_u32 v{vOUT}, v18, v19, s43')
e('s_add_u32 s43, s46, 13')
e('s_sub_u32 s43, s43, s44')
e('s_mul_i32 s43, s43, 43008')
e('s_mul_i32 s45, s47, 192')
e(f's_add_u32 s{sOB}, s43, s45')
for i in pro[8:]: emit(i)
stamp()

def wreads(s):
    out = []
    slot = s % (2 * NSLOT)
    for t in range(3):
        k, b = wreg(s, t)
        for h in range(2):
            off = slot * 6144 + h * 768
            a = vWA[t]
            if slot >= 10: off -= 61440; a = vWB_[t]
            out.append(f'ds_read_b64_tr_b16 {rr(k, b+2*h, 2)}, v{a} offset:{off}')
    return out
def xread(tile, s, reg):
    kh, kw, j = s // 9, (s // 3) % 3, s % 3
    off = XB + (14 - 2 * tile - kh) * XROW + j * 64
    return f'ds_read_b128 v[{reg}:{reg+3}], v{vXA[kw]} offset:{off}'
def mfma(acc, s, t, xreg, first):
    k, b = wreg(s, t)
    c = '0' if first else f'v[{acc+4*t}:{acc+4*t+3}]'
    return f'v_mfma_f32_16x16x32_bf16 v[{acc+4*t}:{acc+4*t+3}], {rr(k,b,4)}, v[{xreg}:{xreg+3}], {c}'
def rows_needed(tiles, s):
    kh = s // 9
    return [('X', 15 - 2 * i - kh - mh) for i in tiles for mh in (0, 1)]
def p1reads(s):
    w = wreads(s)
    x = [xread(i, s, XR + 4 * ((s % 3) * P1 + i)) for i in range(P1)]
    return w[:2] + x[:1] + w[2:] + x[1:]
vmwait([('W', 0)] + rows_needed(range(P1), 0))
e('s_barrier')
stamp()
for i in p1reads(0) + p1reads(1): e(i)
late = []
xleft = list(range(nx, -1, -1))
D2 = 3
p2steps = [(i, s) for i in range(P1, 7) for s in range(27)]
def p2reg(q): return XR + 4 * (q % NXR)
for s in range(27):
    fill = []
    if s % 2 == 0 and s + 2 <= 26:
        r = (s + 2) // 2
        need = [('W', r)] + rows_needed(range(P1), min(s + 3, 26))
        if s == 24: need = list(vm)
        vmwait(need)
    nout = len(p1reads(s + 1)) if s + 1 <= 26 else 0
    e(f's_waitcnt lgkmcnt({min(nout, 15)})')
    if s % 2 == 0 and s + 2 <= 26:
        e('s_barrier')
        rr_ = (s - 2) // 2 + NSLOT
        if s >= 2 and rr_ <= 13:
            fill += dmaW(rr_)
        if s >= 0:
            k = 2 if s >= 8 else 1
            for _ in range(k):
                if xleft: fill += dmaX(xleft.pop(0))
    rd = p1reads(s + 2) if s + 2 <= 26 else []
    if s == 26:
        rd = []
    ms = [mfma(ACC + 12 * i, s, t, XR + 4 * ((s % 3) * P1 + i), s == 0) for i in range(P1) for t in range(3)]
    if s == 26:
        rd = [xread(p2steps[q][0], p2steps[q][1], p2reg(q)) for q in range(D2)]
    items = []
    ri = 0; fi = 0
    for m_i, m in enumerate(ms):
        e(m)
        if ri < len(rd): e(rd[ri]); ri += 1
        if fi < len(fill):
            while fi < len(fill):
                it = fill[fi]; fi += 1; emit(it)
                if isinstance(it, tuple): break
    while ri < len(rd): e(rd[ri]); ri += 1
    while fi < len(fill): emit(fill[fi]); fi += 1
assert not xleft
stamp()
nt = ' nt' if opts['NT'] else ''
cvi = [0]
def epi(tile, acc):
    c = CV + 8 * (cvi[0] % 2); cvi[0] += 1
    out = []
    for t in range(3):
        out.append(f'v_cvt_pk_bf16_f32 v{c+2*t}, v{acc+4*t}, v{acc+4*t+1}')
        out.append(f'v_cvt_pk_bf16_f32 v{c+2*t+1}, v{acc+4*t+2}, v{acc+4*t+3}')
    out.append(f's_sub_u32 s{sTMP}, s{sOB}, {2*tile*43008}')
    out.append(f'buffer_store_dwordx4 v[{c}:{c+3}], v{vOUT}, s[{sO}:{sO+3}], s{sTMP} offen{nt}')
    out.append(f'buffer_store_dwordx2 v[{c+4}:{c+5}], v{vOUT}, s[{sO}:{sO+3}], s{sTMP} offen offset:16{nt}')
    return out
accof = {i: ACC + 12 * i for i in range(P1)}
free = [ACC + 12 * P1]
pend = []
for q, (i, s) in enumerate(p2steps):
    if s == 0:
        assert not pend
        accof[i] = free.pop(0)
        done = list(range(P1)) if i == P1 else [i - 1]
        for d in done:
            pend += epi(d, accof[d]); free.append(accof[d])
    nout = min(D2 - 1, len(p2steps) - 1 - q)
    e(f's_waitcnt lgkmcnt({nout})')
    for t in range(3):
        e(mfma(accof[i], s, t, p2reg(q), s == 0))
        if t == 0 and q + D2 < len(p2steps):
            e(xread(p2steps[q + D2][0], p2steps[q + D2][1], p2reg(q + D2)))
        elif s >= 3 and pend:
            it = pend.pop(0); e(it)
            if it.startswith('s_sub'): e(pend.pop(0))
stamp()
e('s_nop 7')
for it in epi(6, accof[6]): e(it)
if STAMP:
    e('s_waitcnt vmcnt(0)')
    stamp()
    e('s_waitcnt lgkmcnt(0)')
    e(f's_cmp_lg_u32 s3, 0'); e('s_cbranch_scc1 L_end')
    e(f's_and_b32 s43, s2, 31'); e(f's_cmp_lg_u32 s43, 5'); e('s_cbranch_scc1 L_end')
    e(f's_lshr_b32 s43, s2, 5'); e(f's_lshl_b32 s43, s43, 5')
    for k in range(1, nst[0]):
        e(f's_sub_u32 s44, s{sST+2*k}, s{sST}')
        e(f'v_mov_b32 v16, s44'); e('v_mov_b32 v17, 0')
        e(f'buffer_store_dword v16, v17, s[{sDBG}:{sDBG+3}], s43 offen offset:{4*(k-1)}')
lab('L_end')
e('s_endpgm')
name = opts['name']
acc_off = (VEND + 3) // 4 * 4
hdr = f'''; circular 3x3 conv (== rfft2/irfft2 conv) as implicit GEMM on bf16 MFMA; generated by gen/gen1.py
; @launch grid=(224,1,1) block=(256,1,1) lds={LDS}
.amdgcn_target "amdgcn-amd-amdhsa--gfx950"
.text
.globl {name}_kernel
.p2align 8
.type {name}_kernel,@function
{name}_kernel:
'''
ftr = f'''.section .rodata,"a"
.p2align 6
.amdhsa_kernel {name}_kernel
  .amdhsa_next_free_vgpr {acc_off + 252}
  .amdhsa_next_free_sgpr 102
  .amdhsa_accum_offset {acc_off}
  .amdhsa_group_segment_fixed_size 0
  .amdhsa_kernarg_size 40
  .amdhsa_user_sgpr_count 2
  .amdhsa_user_sgpr_kernarg_segment_ptr 1
  .amdhsa_system_sgpr_workgroup_id_x 1
.end_amdhsa_kernel
'''
open(sys.argv[1], 'w').write(hdr + '\n'.join(L) + '\n' + ftr)
```

```python
import sys
opts = dict(P1=3, STAMP=0, NT=0, PACE=4, PRE=1, XM=1, D2=3, SC=0, CPF=0, END=1, name='standalone__fft_conv__vision')
for a in sys.argv[2:]:
    k, v = a.split('=')
    opts[k] = int(v) if v.lstrip('-').isdigit() else v
P1 = opts['P1']; STAMP = opts['STAMP']; PACE = opts['PACE']; PRE = opts['PRE']; XM = opts['XM']
L = []
def e(s): L.append('    ' + s)
def lab(s): L.append(s + ':')
XROW = 3456; XB = 0; WB = 16 * XROW; NSLOT = 8
LDS = WB + NSLOT * 12288
vXA = [1, 2, 3]; vWA = [4, 5, 6]; vWB_ = [7, 8, 9]; vGX = 10; vGW = [11, 12, 13]; vOUT = 14
ACC = 24
NACC = P1 + 3
XR = ACC + 12 * NACC
NXR = 3 * P1
CV = XR + 4 * NXR
WV = CV + 16
VEND = WV + 72
assert VEND <= 256
def wreg(s, t):
    if s < 21: return ('a', (s * 3 + t) * 4)
    return ('v', WV + ((s - 21) * 3 + t) * 4)
def rr(k, b, n): return f'{k}[{b}:{b+n-1}]'
sX = 8; sW = 12; sO = 16; sDBG = 20
sROW = 24
sXM = 40; sWM = 41; sOB = 42; sTMP = 43; sW4 = 44
sEX = 84
sST = 48
nst = [0]
def stamp():
    if STAMP:
        e(f's_mem{"real" if STAMP==2 else ""}time s[{sST+2*nst[0]}:{sST+2*nst[0]+1}]'); nst[0] += 1

e('s_load_dwordx4 s[4:7], s[0:1], 0')
e('s_load_dwordx2 s[16:17], s[0:1], 16')
if STAMP: e('s_load_dwordx2 s[18:19], s[0:1], 24')
stamp()
if STAMP: e('s_memrealtime s[80:81]')
e('s_cmp_ge_u32 s2, 224')
e('s_cbranch_scc1 L_end')
if opts['CPF']:
    e('s_getpc_b64 s[88:89]')
    lab('L_pc')
    e('v_lshlrev_b32 v22, 6, v0')
    e('v_min_u32 v22, L_end-L_pc, v22')
    e('global_load_dword v23, v22, s[88:89]')
e('v_lshrrev_b32 v15, 6, v0')
e('v_and_b32 v0, 63, v0')
e('v_readfirstlane_b32 s3, v15')
e(f'v_lshlrev_b32 v16, 4, v0')
e(f'v_and_b32 v17, 32, v0')
e('s_mul_i32 s44, s3, 3072')
e(f's_add_u32 s{sWM}, s44, {WB}')
e(f'v_add_u32 v{vGW[0]}, s44, v16')
e(f'v_xor_b32 v{vGW[2]}, 32, v{vGW[0]}')
e(f'v_xor_b32 v{vGW[1]}, v17, v{vGW[0]}')
e(f's_mov_b32 s{sW+2}, 165888'); e(f's_mov_b32 s{sW+3}, 0x20000')
e(f's_mov_b32 s{sX+2}, 9633792'); e(f's_mov_b32 s{sX+3}, 0x20000')
e('s_and_b32 s43, s2, 7')
e('s_mul_i32 s43, s43, 28')
e('s_lshr_b32 s45, s2, 3')
e('s_add_u32 s43, s43, s45')
e('s_mul_i32 s45, s43, 4682')
e('s_lshr_b32 s45, s45, 16')
e('s_mul_i32 s46, s45, 14')
e('s_sub_u32 s43, s43, s46')
e('s_lshl_b32 s47, s43, 4')
e('s_lshl_b32 s44, s3, 6')
if not XM: e('s_min_u32 s44, s44, 152')
e(f's_lshl_b32 s{sXM}, s44, 4')
e('v_add_u32 v16, s44, v0')
e('v_mul_u32_u24 v17, 0x1556, v16')
e('v_lshrrev_b32 v17, 16, v17')
e('v_mul_u32_u24 v18, 12, v17')
e('v_sub_u32 v18, v16, v18')
e('v_lshrrev_b32 v19, 1, v17')
e('v_and_b32 v19, 2, v19')
e('v_xor_b32 v18, v18, v19')
e('s_add_u32 s44, s47, 222')
e('v_add_u32 v17, s44, v17')
e('v_subrev_u32 v19, 224, v17')
e('v_min_u32 v17, v17, v19')
e('v_mul_u32_u24 v17, 192, v17')
e(f'v_lshl_add_u32 v{vGX}, v18, 4, v17')
if XM:
    e('s_cmp_eq_u32 s3, 3')
    e(f's_cselect_b32 s{sEX}, 0xffffff, -1')
    e(f's_cselect_b32 s{sEX+1}, 0, -1')
e(f's_add_u32 s45, s46, 222')
e(f's_cmp_ge_u32 s45, 224')
e(f's_cselect_b32 s44, 224, 0')
e(f's_sub_u32 s45, s45, s44')
e(f's_mul_i32 s{sROW}, s45, 43008')
e(f's_add_u32 s{sROW+1}, s{sROW}, 43008')
e(f's_mul_i32 s{sROW+2}, s46, 43008')
for r in range(3, 16): e(f's_add_u32 s{sROW+r}, s{sROW+2}, {43008*(r-2)}')
e('s_waitcnt lgkmcnt(0)')
if STAMP >= 3: stamp()
e(f's_mov_b32 s{sW}, s6'); e(f's_and_b32 s{sW+1}, s7, 0xffff')
e(f's_mov_b32 s{sX}, s4'); e(f's_and_b32 s{sX+1}, s5, 0xffff')

vm = [('C',0)] if opts['CPF'] else []
def dmaW(r):
    g = []
    for i in range(3):
        pre = [f's_add_u32 m0, s{sWM}, {(r % NSLOT) * 12288}', f's_mov_b32 s{sW4}, {r * 12288}'] if i == 0 else []
        g.append((('W', r), pre, f'buffer_load_dwordx4 v{vGW[i]}, s[{sW}:{sW+3}], s{sW4} offen offset:{1024*i} lds', []))
    return g
def dmaX(rho):
    pre = [f's_add_u32 m0, s{sXM}, {XB + rho * XROW}', f's_mov_b64 exec, s[{sEX}:{sEX+1}]' if XM else 's_nop 0']
    return [(('X', rho), pre, f'buffer_load_dwordx4 v{vGX}, s[{sX}:{sX+3}], s{sROW+rho} offen lds', ['s_mov_b64 exec, -1'] if XM else [])]
def emit(d):
    for p in d[1]: e(p)
    vm.append(d[0]); e(d[2])
    for p in d[3]: e(p)
def vmwait(tags):
    idx = max(k for k, t in enumerate(vm) if t in tags)
    for t in tags: assert t in vm, t
    n = len(vm) - 1 - idx
    assert n < 64
    e(f's_waitcnt vmcnt({n})')
def rows_needed(kh): return [('X', 8 - i - kh + o) for i in range(P1) for o in (7, 0)]
q = dmaW(0)
for _, r in rows_needed(0): q += dmaX(r)
npro = len(q) + 3 * PRE
q += dmaW(1) + dmaW(2) + dmaW(3)
lo = 8 - (P1 - 1)
q += dmaX(lo - 1 + 7) + dmaX(lo - 1) + dmaW(4) + dmaW(5) + dmaW(6) + dmaW(7) + dmaX(lo - 2 + 7) + dmaX(lo - 2)
have = set(t[0][1] for t in q if t[0][0] == 'X')
rest = [r for i in range(lo - 3, -1, -1) for r in (i + 7, i) if r not in have]
rest = list(dict.fromkeys(rest))
for r in range(8, 14):
    q += dmaW(r)
    if r >= 10:
        for _ in range(2):
            if rest: q += dmaX(rest.pop(0))
for r in rest: q += dmaX(r)
for d in q[:npro - 3 * PRE]: emit(d)
if STAMP:
    e(f's_mov_b32 s{sDBG}, s18'); e(f's_and_b32 s{sDBG+1}, s19, 0xffff'); e(f's_mov_b32 s{sDBG+2}, 256'); e(f's_mov_b32 s{sDBG+3}, 0x20000')
e(f's_and_b32 s{sO+1}, s17, 0xffff'); e(f's_mov_b32 s{sO+2}, 9633792'); e(f's_mov_b32 s{sO+3}, 0x20000')
e('v_and_b32 v16, 15, v0')
e('v_lshrrev_b32 v17, 4, v0')
e('s_lshr_b32 s86, s3, 1')
e('s_and_b32 s45, s3, 1')
e(f's_xor_b32 s43, s86, 1')
e(f's_mul_i32 s87, s43, 7')
e(f's_mul_i32 s43, s87, {XROW}')
for kw in range(3):
    e(f'v_add_u32 v18, {2-kw}, v16')
    e('v_lshrrev_b32 v19, 1, v18')
    e('v_and_b32 v19, 2, v19')
    e('v_xor_b32 v19, v19, v17')
    e('v_mul_u32_u24 v18, 192, v18')
    e('v_lshl_add_u32 v18, v19, 4, v18')
    e(f'v_add_u32 v{vXA[kw]}, s43, v18')
e('v_lshrrev_b32 v18, 2, v16')
e('v_lshl_add_u32 v18, v17, 3, v18')
e('v_mul_u32_u24 v18, 192, v18')
e(f'v_add_u32 v18, {WB}, v18')
e('v_and_b32 v19, 3, v0')
e('v_mul_u32_u24 v19, 24, v19')
e('s_mul_i32 s43, s45, 96')
e('v_add_u32 v19, s43, v19')
e('v_and_b32 v20, 1, v17')
e('v_lshlrev_b32 v20, 5, v20')
for t in range(3):
    e(f'v_add_u32 v21, {8*t}, v19')
    e('v_xor_b32 v21, v21, v20')
    e(f'v_add_u32 v{vWA[t]}, v21, v18')
    e(f'v_add_u32 v{vWB_[t]}, 61440, v{vWA[t]}')
e('v_mul_u32_u24 v18, 192, v16')
e('v_mul_u32_u24 v19, 24, v17')
e(f'v_add3_u32 v{vOUT}, v18, v19, s43')
e('s_add_u32 s43, s46, s87')
e('s_mul_i32 s43, s43, 43008')
e('s_mul_i32 s45, s47, 192')
e(f's_add_u32 s{sOB}, s43, s45')
for d in q[npro - 3 * PRE:npro]: emit(d)
q = q[npro:]
if STAMP >= 3:
    vmwait([('W', 0)]); stamp()
else: stamp()

def wreads(s):
    out = []
    slot = s % (2 * NSLOT)
    for t in range(3):
        k, b = wreg(s, t)
        for h in range(2):
            off = slot * 6144 + h * 768
            a = vWA[t]
            if slot >= 10: off -= 61440; a = vWB_[t]
            out.append(f'ds_read_b64_tr_b16 {rr(k, b+2*h, 2)}, v{a} offset:{off}')
    return out
def xread(row, kw, j, reg):
    return f'ds_read_b128 v[{reg}:{reg+3}], v{vXA[kw]} offset:{XB + row * XROW + j * 64}'
def mfma(acc, s, t, xreg, first):
    k, b = wreg(s, t)
    c = '0' if first else f'v[{acc+4*t}:{acc+4*t+3}]'
    return f'v_mfma_f32_16x16x32_bf16 v[{acc+4*t}:{acc+4*t+3}], {rr(k,b,4)}, v[{xreg}:{xreg+3}], {c}'
def p1reads(s):
    w = wreads(s)
    x = [xread(8 - i - s // 9, (s // 3) % 3, s % 3, XR + 4 * ((s % 3) * P1 + i)) for i in range(P1)]
    return w[:2] + x[:1] + w[2:] + x[1:]
vmwait([('W', 0)] + rows_needed(0))
e('s_barrier')
stamp()
for i in p1reads(0) + p1reads(1): e(i)
D2 = opts['D2']
p2 = []
for row in range(8 - P1, -1, -1):
    for kw in range(3):
        for j in range(3):
            uses = [(6 - (row - 2 + kh), kh) for kh in (2, 1, 0) if P1 <= 6 - (row - 2 + kh) <= 6]
            p2.append((row, kw, j, uses))
def p2reg(k): return XR + 4 * (k % NXR)
mcount = 0
for s in range(27):
    bar = s % 2 == 0 and s + 2 <= 26
    if bar:
        need = [('W', (s + 2) // 2)] + rows_needed(min(s + 3, 26) // 9)
        while not all(t in vm for t in need): emit(q.pop(0))
        vmwait(need)
    nout = len(p1reads(s + 1)) if s + 1 <= 26 else D2
    e(f's_waitcnt lgkmcnt({min(nout, 15)})')
    if bar: e('s_barrier')
    rd = p1reads(s + 2) if s + 2 <= 26 else []
    ms = [mfma(ACC + 12 * i, s, t, XR + 4 * ((s % 3) * P1 + i), s == 0) for i in range(P1) for t in range(3)]
    for m in ms:
        e(m); mcount += 1
        if rd: e(rd.pop(0))
        if q and mcount % PACE == 0:
            tg = q[0][0]
            if not (tg[0] == 'W' and tg[1] >= NSLOT and s < 2 * (tg[1] - NSLOT) + 2): emit(q.pop(0))
    for r in rd: e(r)
    if s == 25:
        for d in q: emit(d)
        q = []
        e('s_waitcnt vmcnt(0)'); e('s_barrier')
        for k in range(D2): e(xread(p2[k][0], p2[k][1], p2[k][2], p2reg(k)))
stamp()
nt = (' nt' if opts['NT'] else '') + (' sc1' if opts['SC'] & 1 else '') + (' sc0' if opts['SC'] & 2 else '')
cvi = [0]
def epi(tile, acc):
    c = CV + 8 * (cvi[0] % 2); cvi[0] += 1
    out = []
    for t in range(3):
        out.append(f'v_cvt_pk_bf16_f32 v{c+2*t}, v{acc+4*t}, v{acc+4*t+1}')
        out.append(f'v_cvt_pk_bf16_f32 v{c+2*t+1}, v{acc+4*t+2}, v{acc+4*t+3}')
    out.append(f's_add_u32 s{sTMP}, s{sOB}, {(6-tile)*43008}')
    out.append(f'buffer_store_dwordx4 v[{c}:{c+3}], v{vOUT}, s[{sO}:{sO+3}], s{sTMP} offen{nt}')
    out.append(f'buffer_store_dwordx2 v[{c+4}:{c+5}], v{vOUT}, s[{sO}:{sO+3}], s{sTMP} offen offset:16{nt}')
    return out
accof = {i: ACC + 12 * i for i in range(P1)}
for i in range(P1, 7): accof[i] = ACC + 12 * (P1 + (i - P1) % 3)
pend = []; delay = 9
for d in range(P1): pend += epi(d, accof[d])
seen = set(); cnt = {i: 0 for i in range(7)}
for k, (row, kw, j, uses) in enumerate(p2):
    nout = min(D2 - 1, len(p2) - 1 - k)
    e(f's_waitcnt lgkmcnt({nout})')
    first = True
    for (i, kh) in uses:
        for t in range(3):
            if i not in seen and t == 0: assert not any(f'v{accof[i]},' in p for p in pend), 'acc reuse'
            e(mfma(accof[i], kh * 9 + kw * 3 + j, t, p2reg(k), i not in seen))
            delay -= 1
            if first and k + D2 < len(p2):
                e(xread(p2[k + D2][0], p2[k + D2][1], p2[k + D2][2], p2reg(k + D2)))
            elif delay <= 0 and pend:
                it = pend.pop(0); e(it)
                if it.startswith('s_add'): e(pend.pop(0))
            first = False
        seen.add(i); cnt[i] += 1
        if cnt[i] == 27 and i < 6:
            assert not pend
            pend += epi(i, accof[i]); delay = 9
assert not pend
stamp()
e('s_nop 7')
for it in epi(6, accof[6]): e(it)
if STAMP:
    e('s_waitcnt vmcnt(0)')
    stamp()
    e('s_memrealtime s[82:83]')
    e('s_waitcnt lgkmcnt(0)')
    e(f's_cmp_lg_u32 s3, 0'); e('s_cbranch_scc1 L_end')
    e(f's_and_b32 s43, s2, 31'); e(f's_cmp_lg_u32 s43, 5'); e('s_cbranch_scc1 L_end')
    e(f's_lshr_b32 s43, s2, 5'); e(f's_lshl_b32 s43, s43, 5')
    assert nst[0] <= 7
    for k in range(1, nst[0]):
        e(f's_sub_u32 s44, s{sST+2*k}, s{sST}')
        e(f'v_mov_b32 v16, s44'); e('v_mov_b32 v17, 0')
        e(f'buffer_store_dword v16, v17, s[{sDBG}:{sDBG+3}], s43 offen offset:{4*(k-1)}')
    for k in range(2):
        e(f's_and_b32 s44, s{80+2*k}, 0xfffff')
        e(f'v_mov_b32 v16, s44'); e('v_mov_b32 v17, 0')
        e(f'buffer_store_dword v16, v17, s[{sDBG}:{sDBG+3}], s43 offen offset:{24+4*k}')
lab('L_end')
e('s_endpgm')
name = opts['name']
acc_off = (VEND + 3) // 4 * 4
hdr = f'''; circular 3x3 conv (== rfft2/irfft2 conv) as implicit GEMM on bf16 MFMA; generated by gen/gen2.py
; @launch grid=(224,1,1) block=(256,1,1) lds={LDS}
.amdgcn_target "amdgcn-amd-amdhsa--gfx950"
.text
.globl {name}_kernel
.p2align 8
.type {name}_kernel,@function
{name}_kernel:
'''
ftr = f'''.section .rodata,"a"
.p2align 6
.amdhsa_kernel {name}_kernel
  .amdhsa_next_free_vgpr {acc_off + 252}
  .amdhsa_next_free_sgpr 102
  .amdhsa_accum_offset {acc_off}
  .amdhsa_group_segment_fixed_size 0
  .amdhsa_kernarg_size 40
  .amdhsa_user_sgpr_count 2
  .amdhsa_user_sgpr_kernarg_segment_ptr 1
  .amdhsa_system_sgpr_workgroup_id_x 1
.end_amdhsa_kernel
'''
open(sys.argv[1], 'w').write(hdr + '\n'.join(L) + '\n' + ftr)
```

```python
import sys
opts = dict(STAMP=0, NT=0, SC=0, PRE=14, RATE=2, CPF=1, WPF=1, SW=1, XFIRST=1, B2=42, EDEL=9, XL=99, DW=2, HY=1, XG=2, CPOS=0, name='standalone__fft_conv__vision')
for a in sys.argv[2:]:
    k, v = a.split('=')
    opts[k] = int(v) if v.lstrip('-').isdigit() else v
STAMP = opts['STAMP']; SW = opts['SW']
L = []
def e(s): L.append('    ' + s)
def lab(s): L.append(s + ':')
XROW = 3456; XB = 0; WB = 16 * XROW; NSLOT = 8
LDS = WB + NSLOT * 12288
vXA = [1, 2, 3]; vWA = [4, 5, 6]; vWB_ = [7, 8, 9]; vGX = 10; vGW = [11, 12, 13]; vOUT = 14; vOUT2 = 15
ACC = 24; NACC = 5
XR = ACC + 12 * NACC; NXR = 2 * opts['DW'] + 2
CV = XR + 4 * NXR
WV = CV + 16
VEND = WV + 72
def wreg(s, t):
    if s < 21: return ('a', (s * 3 + t) * 4)
    return ('v', WV + ((s - 21) * 3 + t) * 4)
def rr(k, b, n): return f'{k}[{b}:{b+n-1}]'
sX = 8; sW = 12; sO = 16; sDBG = 20; sROW = 24
sXM = 40; sWM = 41; sOB = 42; sTMP = 43; sST = 48
nst = [0]
def stamp():
    if STAMP:
        e(f's_mem{"real" if STAMP==2 else ""}time s[{sST+2*nst[0]}:{sST+2*nst[0]+1}]'); nst[0] += 1
vm = []
def dmaW(r):
    so = f's{64 + r}' if r else '0'
    return [(('W', r), [f's_add_u32 m0, s{sWM}, {(r % NSLOT) * 12288}'] if i == 0 else [],
             f'buffer_load_dwordx4 v{vGW[i]}, s[{sW}:{sW+3}], {so} offen offset:{1024*i} lds') for i in range(3)]
def dmaX(rho):
    return [(('X', rho), [f's_add_u32 m0, s{sXM}, {XB + rho * XROW}'],
             f'buffer_load_dwordx4 v{vGX}, s[{sX}:{sX+3}], s{sROW+rho} offen lds')]
inited = set([('W', 0), ('X', 2)])
def sinit(t):
    if t in inited: return
    inited.add(t)
    if t[0] == 'W': e(f's_mov_b32 s{64 + t[1]}, {t[1] * 12288}')
    else: assert t[1] > 2; e(f's_add_u32 s{sROW+t[1]}, s{sROW+2}, {43008*(t[1]-2)}')
def emit(d):
    for p in d[1]: e(p)
    sinit(d[0])
    if L[-1].strip().startswith('s_add_u32 m0'): e('s_nop 0')
    vm.append(d[0]); e(d[2])
def vmcount(tags):
    idx = max(k for k, t in enumerate(vm) if t in tags)
    n = len(vm) - 1 - idx
    assert n < 64
    return n
def xp(r): return [x for o in (7, 0) for x in dmaX(r + o)] if r >= 2 else dmaX(r)
def xt(r): return [('X', r + 7), ('X', r)]
e('s_load_dwordx4 s[4:7], s[0:1], 0')
e('s_load_dwordx2 s[16:17], s[0:1], 16')
if STAMP: e('s_load_dwordx2 s[18:19], s[0:1], 24')
stamp()
if STAMP: e('s_memrealtime s[80:81]')
e('s_cmp_ge_u32 s2, 224')
e('s_cbranch_scc1 L_end')
if opts['CPF']:
    e('s_getpc_b64 s[88:89]')
    lab('L_pc')
    e('v_lshlrev_b32 v22, 6, v0')
    e('v_min_u32 v22, L_end-L_pc, v22')
    if not opts['CPOS']: e('global_load_dword v23, v22, s[88:89]'); vm.append(('C', 0))
e('v_lshrrev_b32 v15, 6, v0')
e('v_and_b32 v0, 63, v0')
e('v_readfirstlane_b32 s3, v15')
e('s_and_b32 s43, s2, 7')
e('s_mul_i32 s43, s43, 28')
e('s_lshr_b32 s45, s2, 3')
e('s_add_u32 s43, s43, s45')
e('s_mul_i32 s44, s43, 4682')
e('s_lshr_b32 s44, s44, 16')
e('s_mul_i32 s46, s44, 14')
e('s_sub_u32 s43, s43, s46')
e('s_lshl_b32 s47, s43, 4')
e('s_lshl_b32 s44, s3, 6')
e('s_min_u32 s44, s44, 152')
e(f's_lshl_b32 s{sXM}, s44, 4')
e('v_add_u32 v16, s44, v0')
e('v_mul_u32_u24 v17, 0x1556, v16')
e('v_lshrrev_b32 v17, 16, v17')
e('v_mul_u32_u24 v18, 12, v17')
e('v_sub_u32 v18, v16, v18')
e('v_lshrrev_b32 v19, 1, v17')
e('v_and_b32 v19, 2, v19')
e('v_xor_b32 v18, v18, v19')
e('s_add_u32 s44, s47, 222')
e('v_add_u32 v17, s44, v17')
e('v_subrev_u32 v19, 224, v17')
e('v_min_u32 v17, v17, v19')
e('v_mul_u32_u24 v17, 192, v17')
e(f'v_lshl_add_u32 v{vGX}, v18, 4, v17')
e(f's_mul_i32 s{sROW+2}, s46, 43008')
e(f's_mov_b32 s{sX+2}, 9633792'); e(f's_mov_b32 s{sX+3}, 0x20000')
def wsetup():
    e(f'v_lshlrev_b32 v16, 4, v0')
    e(f'v_and_b32 v17, 32, v0')
    e('s_mul_i32 s44, s3, 3072')
    e(f's_add_u32 s{sWM}, s44, {WB}')
    e(f'v_add_u32 v{vGW[0]}, s44, v16')
    e(f'v_xor_b32 v{vGW[2]}, 32, v{vGW[0]}')
    e(f'v_xor_b32 v{vGW[1]}, v17, v{vGW[0]}')
    e(f's_mov_b32 s{sW+2}, 165888'); e(f's_mov_b32 s{sW+3}, 0x20000')
    if opts['WPF']:
        e('s_mul_i32 s45, s45, 47*128')
        e('s_mul_i32 s44, s3, 12*128')
        e('s_add_u32 s45, s45, s44')
        e('v_min_u32 v21, 11, v0')
        e('v_lshl_add_u32 v21, v21, 7, s45')
wsetup()
e('s_waitcnt lgkmcnt(0)')
if STAMP >= 3: stamp()
e(f's_mov_b32 s{sX}, s4'); e(f's_and_b32 s{sX+1}, s5, 0xffff')
e(f's_mov_b32 s{sW}, s6'); e(f's_and_b32 s{sW+1}, s7, 0xffff')
if opts['HY']:
    q = xp(8) + xp(7) + dmaW(0) + dmaW(1) + dmaW(2) + dmaW(3) + xp(6) + dmaW(4) + dmaW(5) + dmaW(6) + dmaW(7) + xp(5)
    for r in range(8, 14): q += dmaW(r)
    for r in range(4, -1, -1): q += xp(r)
else:
    q = xp(8) + dmaW(0) + dmaW(1) + dmaW(2) + dmaW(3) + xp(7) + dmaW(4) + dmaW(5) + dmaW(6) + dmaW(7) + xp(6)
    for r in range(8, 14): q += dmaW(r)
    for r in range(5, -1, -1): q += xp(r)
N0 = 7 if opts['HY'] else 5
for d in q[:N0]: emit(d)
if opts['CPF'] and opts['CPOS']:
    e('global_load_dword v23, v22, s[88:89]'); vm.append(('C', 0))
if opts['WPF']:
    e(f'buffer_load_dword v23, v21, s[{sW}:{sW+3}], 0 offen'); vm.append(('P', 0))
for d in q[N0:opts['PRE']]: emit(d)
q = q[opts['PRE']:]
for r in range(1, 14): sinit(('W', r))
for r in range(3, 16): sinit(('X', r))
inited.add(('X', 0)); inited.add(('X', 1))
e(f's_add_u32 s45, s46, 222')
e(f's_cmp_ge_u32 s45, 224')
e(f's_cselect_b32 s44, 224, 0')
e(f's_sub_u32 s45, s45, s44')
e(f's_mul_i32 s{sROW}, s45, 43008')
e(f's_add_u32 s{sROW+1}, s{sROW}, 43008')
if STAMP:
    e(f's_mov_b32 s{sDBG}, s18'); e(f's_and_b32 s{sDBG+1}, s19, 0xffff'); e(f's_mov_b32 s{sDBG+2}, 256'); e(f's_mov_b32 s{sDBG+3}, 0x20000')
e(f's_and_b32 s{sO+1}, s17, 0xffff'); e(f's_mov_b32 s{sO+2}, 9633792'); e(f's_mov_b32 s{sO+3}, 0x20000')
e('v_and_b32 v16, 15, v0')
e('v_lshrrev_b32 v17, 4, v0')
e('s_lshr_b32 s86, s3, 1')
e('s_and_b32 s45, s3, 1')
e(f's_xor_b32 s43, s86, 1')
e(f's_mul_i32 s87, s43, 7')
e(f's_mul_i32 s43, s87, {XROW}')
for kw in range(3):
    e(f'v_add_u32 v18, {2-kw}, v16')
    e('v_lshrrev_b32 v19, 1, v18')
    e('v_and_b32 v19, 2, v19')
    e('v_xor_b32 v19, v19, v17')
    e('v_mul_u32_u24 v18, 192, v18')
    e('v_lshl_add_u32 v18, v19, 4, v18')
    e(f'v_add_u32 v{vXA[kw]}, s43, v18')
e('v_lshrrev_b32 v18, 2, v16')
e('v_lshl_add_u32 v18, v17, 3, v18')
e('v_mul_u32_u24 v18, 192, v18')
e(f'v_add_u32 v18, {WB}, v18')
e('v_and_b32 v19, 3, v0')
e('v_and_b32 v20, 1, v17')
e('v_lshlrev_b32 v20, 5, v20')
if SW:
    e('s_lshl_b32 s43, s45, 7')
    e('s_lshl_b32 s44, s45, 5')
    e('s_add_u32 s44, s44, 64')
    e('v_lshlrev_b32 v19, 3, v19')
    for t in range(3):
        if t < 2: e(f'v_add3_u32 v21, v19, {32*t}, s43')
        else: e('v_add_u32 v21, s44, v19')
        e('v_xor_b32 v21, v21, v20')
        e(f'v_add_u32 v{vWA[t]}, v21, v18')
        e(f'v_add_u32 v{vWB_[t]}, 61440, v{vWA[t]}')
    e('v_mul_u32_u24 v18, 192, v16')
    e('v_lshrrev_b32 v19, 1, v17')
    e('v_lshl_add_u32 v19, v19, 4, v20')
    e(f'v_add3_u32 v{vOUT}, v18, v19, s43')
    e('v_lshl_add_u32 v18, v17, 3, v18')
    e(f'v_add_u32 v{vOUT2}, s44, v18')
else:
    e('v_mul_u32_u24 v19, 24, v19')
    e('s_mul_i32 s43, s45, 96')
    e('v_add_u32 v19, s43, v19')
    for t in range(3):
        e(f'v_add_u32 v21, {8*t}, v19')
        e('v_xor_b32 v21, v21, v20')
        e(f'v_add_u32 v{vWA[t]}, v21, v18')
        e(f'v_add_u32 v{vWB_[t]}, 61440, v{vWA[t]}')
    e('v_mul_u32_u24 v18, 192, v16')
    e('v_mul_u32_u24 v19, 24, v17')
    e(f'v_add3_u32 v{vOUT}, v18, v19, s43')
    e(f'v_add_u32 v{vOUT2}, 16, v{vOUT}')
e('s_add_u32 s43, s46, s87')
e('s_mul_i32 s43, s43, 43008')
e('s_mul_i32 s45, s47, 192')
e(f's_add_u32 s{sOB}, s43, s45')
F = []
HY = opts['HY']
def alluses(row): return [(8 - row - kh, kh) for kh in range(3) if 0 <= 8 - row - kh <= 6]
fidx = 0
for st in range(9 if not HY else 8):
    for kw in range(3):
        for j in range(3):
            if HY and st < 3:
                fr = [(7 - st, [u for u in alluses(7 - st) if u[1] <= st]), (8 - st, [(0, st)])]
            else:
                row = 8 - st - (1 if HY else 0); fr = [(row, alluses(row))]
            F.append([(row, kw, j, uses, fidx + n) for n, (row, uses) in enumerate(fr)]); fidx += len(fr)
NF = len(F)
def rowsof(k): return [t for f in F[k] for t in xt(f[0])]
ds = []
def reads(k):
    out = []
    for (row, kw, j, _, fi) in F[k]:
        reg = XR + 4 * (fi % NXR)
        out.append((k, f'ds_read_b128 v[{reg}:{reg+3}], v{vXA[kw]} offset:{XB + row * XROW + j * 64}'))
    if k <= 26:
        slot = k % (2 * NSLOT)
        for t in range(3):
            kk, b = wreg(k, t)
            for h in range(2):
                off = slot * 6144 + h * 768; a = vWA[t]
                if slot >= 10: off -= 61440; a = vWB_[t]
                out.append((k, f'ds_read_b64_tr_b16 {rr(kk, b+2*h, 2)}, v{a} offset:{off}'))
    return out
def eds(r): ds.append(r[0]); e(r[1])
nt = (' nt' if opts['NT'] else '') + (' sc1' if opts['SC'] & 1 else '') + (' sc0' if opts['SC'] & 2 else '')
def epi(tile):
    acc = ACC + 12 * (tile % NACC); c = CV + 8 * (tile % 2)
    out = []
    for t in range(3):
        out.append(f'v_cvt_pk_bf16_f32 v{c+2*t}, v{acc+4*t}, v{acc+4*t+1}')
        out.append(f'v_cvt_pk_bf16_f32 v{c+2*t+1}, v{acc+4*t+2}, v{acc+4*t+3}')
    out.append(f's_add_u32 s{sTMP}, s{sOB}, {(6-tile)*43008}')
    st4 = f'buffer_store_dwordx4 v[{c}:{c+3}], v{vOUT}, s[{sO}:{sO+3}], s{sTMP} offen{nt}'
    st2 = f'buffer_store_dwordx2 v[{c+4}:{c+5}], v{vOUT2}, s[{sO}:{sO+3}], s{sTMP} offen{nt}'
    if SW: out += [f'v_permlane16_swap_b32 v{c}, v{c+2}', f'v_permlane16_swap_b32 v{c+1}, v{c+3}', st2, st4]
    else: out += [st4, st2]
    return out
covered = set()
def barrier(need, lg=None):
    global q
    need = [t for t in need if t not in covered]
    while not all(vm.count(t) == (3 if t[0] == 'W' else 1) for t in need):
        print('forced', q[0][0], file=sys.stderr); emit(q.pop(0)); pre_done[0] = False
    n = vmcount(need)
    for t in vm[:len(vm) - n]: covered.add(t)
    e(f's_waitcnt vmcnt({n})' + (f' lgkmcnt({lg})' if lg is not None else ''))
    e('s_barrier')
pre_done = [False]
DW = opts['DW']
barrier([('W', r) for r in range((DW + 1) // 2)] + rowsof(0))
stamp()
for kk in range(DW):
    for r in reads(kk): eds(r)
nextrd = DW
pend = []; delay = 0; cnt = {}; done = set(); gap_since = [0]
B2 = opts['B2']
for k, frs in enumerate(F):
    if k == 27 or (STAMP == 1 and k in (9, 18)): stamp()
    idx = max(i for i, t in enumerate(ds) if t == k)
    lg = min(15, len(ds) - 1 - idx)
    if (k + DW) % 2 == 0 and k + DW <= 26:
        need = [('W', (k + DW) // 2)] + rowsof(k + DW + 1)
        barrier(need, lg)
    elif k + DW > 26 and k + 3 < NF and any(t not in covered for t in rowsof(k + 3)):
        r0 = F[k + 3][0][0]
        barrier([t for r in range(max(0, r0 - opts['XG'] + 1), r0 + 1) for t in xt(r)], lg)
    else: e(f's_waitcnt lgkmcnt({lg})')
    D = DW if k < 26 else 3
    rd = []
    while nextrd <= min(k + D, NF - 1):
        for t in rowsof(nextrd): assert t in covered, (k, t)
        rd += reads(nextrd); nextrd += 1
    ms = []
    for (row, kw, j, uses, fi) in frs:
        for (i, kh) in uses:
            for t in range(3):
                acc = ACC + 12 * (i % NACC) + 4 * t
                kk, b = wreg(kh * 9 + kw * 3 + j, t)
                c = f'v[{acc}:{acc+3}]' if cnt.get(i, 0) else '0'
                if not cnt.get(i, 0): assert not any(f'v{acc},' in p for p in pend)
                x = XR + 4 * (fi % NXR)
                ms.append(f'v_mfma_f32_16x16x32_bf16 v[{acc}:{acc+3}], {rr(kk,b,4)}, v[{x}:{x+3}], {c}')
            cnt[i] = cnt.get(i, 0) + 1
    ndma = opts['RATE']
    per = -(-len(rd) // len(ms))
    for mi, m in enumerate(ms):
        e(m); gap_since[0] += 1
        used = 0
        while rd and used < per: eds(rd.pop(0)); used += 1
        last = mi == len(ms) - 1
        while used < (1 if last else 2) or (last and len(ms) == 3 and q and ndma):
            ok = q and ndma and not (q[0][0][0] == 'X' and q[0][0] not in [t for kk in range(k, min(NF, k + opts['XL'])) for t in rowsof(kk)]) and not (q[0][0][0] == 'W' and q[0][0][1] >= NSLOT and k < 2 * (q[0][0][1] - NSLOT) + 2 + DW % 2 - (DW // 2 - 1) * 0)
            if ok and (len(ms) <= 6 or mi % 2 == 0 or pre_done[0]):
                if q[0][1] and not pre_done[0]:
                    e(q[0][1][0]); pre_done[0] = True; used += 1
                    if not (last and len(ms) == 3): break
                else:
                    d = q.pop(0); emit((d[0], [], d[2])); pre_done[0] = False; ndma -= 1; used += 1
                    if len(ms) > 3: break
            elif pend:
                it = pend.pop(0)
                if it == '@9':
                    if gap_since[0] < 9: pend.insert(0, it); break
                    it = pend.pop(0)
                e(it); used += 1
                if 'store' in it: vm.append(('S', 0))
                break
            else: break
    for i in range(6):
        if cnt.get(i, 0) == 27 and i not in done:
            if not any(p.startswith('v_cvt') or True for p in pend): delay = opts['EDEL']
            else: delay = max(delay, 1)
            pend += ['@9'] + epi(i); done.add(i); gap_since[0] = 0
assert not pend and not q
stamp()
e('s_nop 7')
for it in epi(6):
    if 'permlane16_swap_b32 v%d,' % CV in it: e('s_nop 0')
    e(it)
if STAMP:
    e('s_waitcnt vmcnt(0)')
    stamp()
    e('s_memrealtime s[82:83]')
    e('s_waitcnt lgkmcnt(0)')
    e(f's_cmp_lg_u32 s3, 0'); e('s_cbranch_scc1 L_end')
    e(f's_and_b32 s43, s2, 31'); e(f's_cmp_lg_u32 s43, 5'); e('s_cbranch_scc1 L_end')
    e(f's_lshr_b32 s43, s2, 5'); e(f's_lshl_b32 s43, s43, 5')
    assert nst[0] <= 7
    for k in range(1, nst[0]):
        e(f's_sub_u32 s44, s{sST+2*k}, s{sST}')
        e(f'v_mov_b32 v16, s44'); e('v_mov_b32 v17, 0')
        e(f'buffer_store_dword v16, v17, s[{sDBG}:{sDBG+3}], s43 offen offset:{4*(k-1)}')
    for k in range(2):
        e(f's_and_b32 s44, s{80+2*k}, 0xfffff')
        e(f'v_mov_b32 v16, s44'); e('v_mov_b32 v17, 0')
        e(f'buffer_store_dword v16, v17, s[{sDBG}:{sDBG+3}], s43 offen offset:{24+4*k}')
lab('L_end')
e('s_endpgm')
name = opts['name']
acc_off = (VEND + 3) // 4 * 4
hdr = f'''; circular 3x3 conv (== rfft2/irfft2 conv) as implicit GEMM on bf16 MFMA; generated by gen/gen3.py
; @launch grid=(224,1,1) block=(256,1,1) lds={LDS}
.amdgcn_target "amdgcn-amd-amdhsa--gfx950"
.text
.globl {name}_kernel
.p2align 8
.type {name}_kernel,@function
{name}_kernel:
'''
ftr = f'''.section .rodata,"a"
.p2align 6
.amdhsa_kernel {name}_kernel
  .amdhsa_next_free_vgpr {acc_off + 252}
  .amdhsa_next_free_sgpr 102
  .amdhsa_accum_offset {acc_off}
  .amdhsa_group_segment_fixed_size 0
  .amdhsa_kernarg_size 40
  .amdhsa_user_sgpr_count 2
  .amdhsa_user_sgpr_kernarg_segment_ptr 1
  .amdhsa_system_sgpr_workgroup_id_x 1
.end_amdhsa_kernel
'''
open(sys.argv[1], 'w').write(hdr + '\n'.join(L) + '\n' + ftr)
```

```python
import sys
opts = dict(STAMP=0, NT=0, SC=0, PRE=14, RATE=2, CPF=1, WPF=1, SW=1, XFIRST=1, B2=42, EDEL=9, XL=99, WLATE=1, TR=1, DW=2, HY=1, XG=2, CPOS=0, name='standalone__fft_conv__vision')
for a in sys.argv[2:]:
    k, v = a.split('=')
    opts[k] = int(v) if v.lstrip('-').isdigit() else v
STAMP = opts['STAMP']; SW = opts['SW']
L = []
def e(s): L.append('    ' + s)
def lab(s): L.append(s + ':')
XROW = 3456; XB = 0; WB = 16 * XROW; NSLOT = 8
LDS = WB + NSLOT * 12288
vXA = [1, 2, 3]; vWA = [4, 5, 6]; vWB_ = [7, 8, 9]; vGX = 10; vGW = [11, 12, 13]; vOUT = 14; vOUT2 = 15
ACC = 24; NACC = 5
XR = ACC + 12 * NACC; NXR = 2 * opts['DW'] + 2
CV = XR + 4 * NXR
WV = CV + 16
VEND = WV + 72
def wreg(s, t):
    if s < 21: return ('a', (s * 3 + t) * 4)
    return ('v', WV + ((s - 21) * 3 + t) * 4)
def rr(k, b, n): return f'{k}[{b}:{b+n-1}]'
sX = 8; sW = 12; sO = 16; sDBG = 20; sROW = 24
sXM = 40; sWM = 41; sOB = 42; sTMP = 43; sST = 48
nst = [0]
def stamp():
    if STAMP:
        e(f's_mem{"real" if STAMP==2 else ""}time s[{sST+2*nst[0]}:{sST+2*nst[0]+1}]'); nst[0] += 1
vm = []
def dmaW(r):
    so = f's{64 + r}' if r else '0'
    return [(('W', r), [f's_add_u32 m0, s{sWM}, {(r % NSLOT) * 12288}'] if i == 0 else [],
             f'buffer_load_dwordx4 v{vGW[i]}, s[{sW}:{sW+3}], {so} offen offset:{1024*i} lds') for i in range(3)]
def dmaX(rho):
    return [(('X', rho), [f's_add_u32 m0, s{sXM}, {XB + rho * XROW}'],
             f'buffer_load_dwordx4 v{vGX}, s[{sX}:{sX+3}], s{sROW+rho} offen lds')]
inited = set([('W', 0), ('X', 2)])
def sinit(t):
    if t in inited: return
    inited.add(t)
    if t[0] == 'W': e(f's_mov_b32 s{64 + t[1]}, {t[1] * 12288}')
    else: assert t[1] > 2; e(f's_add_u32 s{sROW+t[1]}, s{sROW+2}, {43008*(t[1]-2)}')
def emit(d):
    for p in d[1]: e(p)
    sinit(d[0])
    if L[-1].strip().startswith('s_add_u32 m0'): e('s_nop 0')
    vm.append(d[0]); e(d[2])
def vmcount(tags):
    idx = max(k for k, t in enumerate(vm) if t in tags)
    n = len(vm) - 1 - idx
    assert n < 64
    return n
def xp(r): return [x for o in (7, 0) for x in dmaX(r + o)] if r >= 2 else dmaX(r)
def xt(r): return [('X', r + 7), ('X', r)]
e('s_load_dwordx4 s[4:7], s[0:1], 0')
e('s_load_dwordx2 s[16:17], s[0:1], 16')
if STAMP: e('s_load_dwordx2 s[18:19], s[0:1], 24')
stamp()
if STAMP: e('s_memrealtime s[80:81]')
e('s_cmp_ge_u32 s2, 224')
e('s_cbranch_scc1 L_end')
if opts['CPF']:
    e('s_getpc_b64 s[88:89]')
    lab('L_pc')
    e('v_lshlrev_b32 v22, 6, v0')
    e('v_min_u32 v22, L_end-L_pc, v22')
    if not opts['CPOS']: e('global_load_dword v23, v22, s[88:89]'); vm.append(('C', 0))
e('v_lshrrev_b32 v15, 6, v0')
e('v_and_b32 v0, 63, v0')
e('v_readfirstlane_b32 s3, v15')
e('s_lshr_b32 s45, s2, 3')
e('s_and_b32 s43, s2, 7')
e('s_cmp_ge_u32 s45, 14')
e('s_cselect_b32 s44, 14, 0')
e('s_sub_u32 s47, s45, s44')
e('s_mul_i32 s46, s43, 28')
e('s_add_u32 s46, s46, s44')
e('s_mulk_i32 s47, 3072')
e('s_lshl_b32 s44, s3, 6')
e('s_min_u32 s44, s44, 152')
e(f's_lshl_b32 s{sXM}, s44, 4')
e('v_add_u32 v16, s44, v0')
e('v_lshrrev_b32 v17, 4, v16')
e('v_mul_u32_u24 v17, 43, v17')
e('v_lshrrev_b32 v17, 2, v17')
e('v_and_b32 v17, 32, v17')
e('v_lshlrev_b32 v16, 4, v16')
e('v_xor_b32 v16, v16, v17')
e('s_sub_u32 s44, s47, 384')
e('v_add_u32 v16, s44, v16')
e('v_add_u32 v17, 43008, v16')
e(f'v_min_u32 v{vGX}, v16, v17')
e(f's_mul_i32 s{sROW+2}, s46, 43008')
e(f's_mov_b32 s{sX+2}, 9633792'); e(f's_mov_b32 s{sX+3}, 0x20000')
def wsetup():
    e(f'v_lshlrev_b32 v16, 4, v0')
    e(f'v_and_b32 v17, 32, v0')
    e('s_mul_i32 s44, s3, 3072')
    e(f's_add_u32 s{sWM}, s44, {WB}')
    e(f'v_add_u32 v{vGW[0]}, s44, v16')
    e(f'v_xor_b32 v{vGW[2]}, 32, v{vGW[0]}')
    e(f'v_xor_b32 v{vGW[1]}, v17, v{vGW[0]}')
    e(f's_mov_b32 s{sW+2}, 165888'); e(f's_mov_b32 s{sW+3}, 0x20000')
    if opts['WPF']:
        e('s_mul_i32 s45, s45, 47*128')
        e('s_mul_i32 s44, s3, 12*128')
        e('s_add_u32 s45, s45, s44')
        e('v_min_u32 v21, 11, v0')
        e('v_lshl_add_u32 v21, v21, 7, s45')
if not opts['WLATE']: wsetup()
e('s_waitcnt lgkmcnt(0)')
if STAMP >= 3: stamp()
e(f's_mov_b32 s{sX}, s4'); e(f's_and_b32 s{sX+1}, s5, 0xffff')
e(f's_mov_b32 s{sW}, s6'); e(f's_and_b32 s{sW+1}, s7, 0xffff')
if opts['HY']:
    q = xp(8) + xp(7) + dmaW(0) + dmaW(1) + dmaW(2) + dmaW(3) + xp(6) + dmaW(4) + dmaW(5) + dmaW(6) + dmaW(7) + xp(5)
    for r in range(8, 14): q += dmaW(r)
    for r in range(4, -1, -1): q += xp(r)
else:
    q = xp(8) + dmaW(0) + dmaW(1) + dmaW(2) + dmaW(3) + xp(7) + dmaW(4) + dmaW(5) + dmaW(6) + dmaW(7) + xp(6)
    for r in range(8, 14): q += dmaW(r)
    for r in range(5, -1, -1): q += xp(r)
N0 = 7 if opts['HY'] else 5
for d in q[:N0 - 3]: emit(d)
if opts['WLATE']: wsetup()
for d in q[N0 - 3:N0]: emit(d)
if opts['CPF'] and opts['CPOS']:
    e('global_load_dword v23, v22, s[88:89]'); vm.append(('C', 0))
if opts['WPF']:
    e(f'buffer_load_dword v23, v21, s[{sW}:{sW+3}], 0 offen'); vm.append(('P', 0))
for d in q[N0:opts['PRE']]: emit(d)
q = q[opts['PRE']:]
for r in range(1, 14): sinit(('W', r))
for r in range(3, 16): sinit(('X', r))
inited.add(('X', 0)); inited.add(('X', 1))
e(f's_add_u32 s45, s46, 222')
e(f's_cmp_ge_u32 s45, 224')
e(f's_cselect_b32 s44, 224, 0')
e(f's_sub_u32 s45, s45, s44')
e(f's_mul_i32 s{sROW}, s45, 43008')
e(f's_add_u32 s{sROW+1}, s{sROW}, 43008')
if STAMP:
    e(f's_mov_b32 s{sDBG}, s18'); e(f's_and_b32 s{sDBG+1}, s19, 0xffff'); e(f's_mov_b32 s{sDBG+2}, 256'); e(f's_mov_b32 s{sDBG+3}, 0x20000')
e(f's_and_b32 s{sO+1}, s17, 0xffff'); e(f's_mov_b32 s{sO+2}, 9633792'); e(f's_mov_b32 s{sO+3}, 0x20000')
e('v_and_b32 v16, 15, v0')
e('v_lshrrev_b32 v17, 4, v0')
e('s_lshr_b32 s86, s3, 1')
e('s_and_b32 s45, s3, 1')
e(f's_xor_b32 s43, s86, 1')
e(f's_mul_i32 s87, s43, 7')
e(f's_mul_i32 s43, s87, {XROW}')
for kw in range(3):
    e(f'v_add_u32 v18, {2-kw}, v16')
    e('v_lshrrev_b32 v19, 1, v18')
    e('v_and_b32 v19, 2, v19')
    e('v_xor_b32 v19, v19, v17')
    e('v_mul_u32_u24 v18, 192, v18')
    e('v_lshl_add_u32 v18, v19, 4, v18')
    e(f'v_add_u32 v{vXA[kw]}, s43, v18')
e('v_lshrrev_b32 v18, 2, v16')
e('v_lshl_add_u32 v18, v17, 3, v18')
e('v_mul_u32_u24 v18, 192, v18')
e(f'v_add_u32 v18, {WB}, v18')
e('v_and_b32 v19, 3, v0')
e('v_and_b32 v20, 1, v17')
e('v_lshlrev_b32 v20, 5, v20')
if SW:
    e('s_lshl_b32 s43, s45, 7')
    e('s_lshl_b32 s44, s45, 5')
    e('s_add_u32 s44, s44, 64')
    e('v_lshlrev_b32 v19, 3, v19')
    for t in range(3):
        if t < 2: e(f'v_add3_u32 v21, v19, {32*t}, s43')
        else: e('v_add_u32 v21, s44, v19')
        e('v_xor_b32 v21, v21, v20')
        e(f'v_add_u32 v{vWA[t]}, v21, v18')
        e(f'v_add_u32 v{vWB_[t]}, 61440, v{vWA[t]}')
    e('v_mul_u32_u24 v18, 192, v16')
    e('v_lshrrev_b32 v19, 1, v17')
    e('v_lshl_add_u32 v19, v19, 4, v20')
    e(f'v_add3_u32 v{vOUT}, v18, v19, s43')
    e('v_lshl_add_u32 v18, v17, 3, v18')
    e(f'v_add_u32 v{vOUT2}, s44, v18')
else:
    e('v_mul_u32_u24 v19, 24, v19')
    e('s_mul_i32 s43, s45, 96')
    e('v_add_u32 v19, s43, v19')
    for t in range(3):
        e(f'v_add_u32 v21, {8*t}, v19')
        e('v_xor_b32 v21, v21, v20')
        e(f'v_add_u32 v{vWA[t]}, v21, v18')
        e(f'v_add_u32 v{vWB_[t]}, 61440, v{vWA[t]}')
    e('v_mul_u32_u24 v18, 192, v16')
    e('v_mul_u32_u24 v19, 24, v17')
    e(f'v_add3_u32 v{vOUT}, v18, v19, s43')
    e(f'v_add_u32 v{vOUT2}, 16, v{vOUT}')
e('s_add_u32 s43, s46, s87')
e('s_mul_i32 s43, s43, 43008')
e(f's_add_u32 s{sOB}, s43, s47')
F = []
HY = opts['HY']
def alluses(row): return [(8 - row - kh, kh) for kh in range(3) if 0 <= 8 - row - kh <= 6]
fidx = 0
for st in range(9 if not HY else 8):
    for kw in range(3):
        for j in range(3):
            if HY and st < 3:
                fr = [(7 - st, [u for u in alluses(7 - st) if u[1] <= st]), (8 - st, [(0, st)])]
            else:
                row = 8 - st - (1 if HY else 0); fr = [(row, alluses(row))]
            F.append([(row, kw, j, uses, fidx + n) for n, (row, uses) in enumerate(fr)]); fidx += len(fr)
if opts['TR']:
    G = []; tail = []
    for fr in F:
        (row, kw, j, uses, fi) = fr[0]
        if len(fr) == 1 and row <= 2:
            u = [x for x in uses if x[0] != 6]
            if u: G.append([(row, kw, j, u, 0)])
            tail.append([(row, kw, j, [x for x in uses if x[0] == 6], 0)])
        else: G.append(fr)
    F = []; fidx = 0
    for fr in G + tail:
        F.append([f[:4] + (fidx + n,) for n, f in enumerate(fr)]); fidx += len(fr)
NF = len(F)
def rowsof(k): return [t for f in F[k] for t in xt(f[0])]
ds = []
def reads(k):
    out = []
    for (row, kw, j, _, fi) in F[k]:
        reg = XR + 4 * (fi % NXR)
        out.append((k, f'ds_read_b128 v[{reg}:{reg+3}], v{vXA[kw]} offset:{XB + row * XROW + j * 64}'))
    if k <= 26:
        slot = k % (2 * NSLOT)
        for t in range(3):
            kk, b = wreg(k, t)
            for h in range(2):
                off = slot * 6144 + h * 768; a = vWA[t]
                if slot >= 10: off -= 61440; a = vWB_[t]
                out.append((k, f'ds_read_b64_tr_b16 {rr(kk, b+2*h, 2)}, v{a} offset:{off}'))
    return out
def eds(r): ds.append(r[0]); e(r[1])
nt = (' nt' if opts['NT'] else '') + (' sc1' if opts['SC'] & 1 else '') + (' sc0' if opts['SC'] & 2 else '')
def epi(tile):
    acc = ACC + 12 * (tile % NACC); c = CV + 8 * (tile % 2)
    out = []
    for t in range(3):
        out.append(f'v_cvt_pk_bf16_f32 v{c+2*t}, v{acc+4*t}, v{acc+4*t+1}')
        out.append(f'v_cvt_pk_bf16_f32 v{c+2*t+1}, v{acc+4*t+2}, v{acc+4*t+3}')
    out.append(f's_add_u32 s{sTMP}, s{sOB}, {(6-tile)*43008}')
    st4 = f'buffer_store_dwordx4 v[{c}:{c+3}], v{vOUT}, s[{sO}:{sO+3}], s{sTMP} offen{nt}'
    st2 = f'buffer_store_dwordx2 v[{c+4}:{c+5}], v{vOUT2}, s[{sO}:{sO+3}], s{sTMP} offen{nt}'
    if SW: out += [f'v_permlane16_swap_b32 v{c}, v{c+2}', f'v_permlane16_swap_b32 v{c+1}, v{c+3}', st2, st4]
    else: out += [st4, st2]
    return out
covered = set()
def barrier(need, lg=None):
    global q
    need = [t for t in need if t not in covered]
    while not all(vm.count(t) == (3 if t[0] == 'W' else 1) for t in need):
        print('forced', q[0][0], file=sys.stderr); emit(q.pop(0)); pre_done[0] = False
    n = vmcount(need)
    for t in vm[:len(vm) - n]: covered.add(t)
    e(f's_waitcnt vmcnt({n})' + (f' lgkmcnt({lg})' if lg is not None else ''))
    e('s_barrier')
pre_done = [False]
DW = opts['DW']
barrier([('W', r) for r in range((DW + 1) // 2)] + rowsof(0))
stamp()
for kk in range(DW):
    for r in reads(kk): eds(r)
nextrd = DW
pend = []; delay = 0; cnt = {}; done = set(); gap_since = [0]
B2 = opts['B2']
for k, frs in enumerate(F):
    if k == 27 or (STAMP == 1 and k in (9, 18)): stamp()
    idx = max(i for i, t in enumerate(ds) if t == k)
    lg = min(15, len(ds) - 1 - idx)
    if (k + DW) % 2 == 0 and k + DW <= 26:
        need = [('W', (k + DW) // 2)] + rowsof(k + DW + 1)
        barrier(need, lg)
    elif k + DW > 26 and k + 3 < NF and any(t not in covered for t in rowsof(k + 3)):
        r0 = F[k + 3][0][0]
        barrier([t for r in range(max(0, r0 - opts['XG'] + 1), r0 + 1) for t in xt(r)], lg)
    else: e(f's_waitcnt lgkmcnt({lg})')
    D = DW if k < 26 else 3
    rd = []
    while nextrd <= min(k + D, NF - 1):
        for t in rowsof(nextrd): assert t in covered, (k, t)
        rd += reads(nextrd); nextrd += 1
    ms = []
    for (row, kw, j, uses, fi) in frs:
        for (i, kh) in uses:
            for t in range(3):
                acc = ACC + 12 * (i % NACC) + 4 * t
                kk, b = wreg(kh * 9 + kw * 3 + j, t)
                c = f'v[{acc}:{acc+3}]' if cnt.get(i, 0) else '0'
                if not cnt.get(i, 0): assert not any(f'v{acc},' in p for p in pend)
                x = XR + 4 * (fi % NXR)
                ms.append(f'v_mfma_f32_16x16x32_bf16 v[{acc}:{acc+3}], {rr(kk,b,4)}, v[{x}:{x+3}], {c}')
            cnt[i] = cnt.get(i, 0) + 1
    ndma = opts['RATE']
    per = -(-len(rd) // len(ms))
    for mi, m in enumerate(ms):
        e(m); gap_since[0] += 1
        used = 0
        while rd and used < per: eds(rd.pop(0)); used += 1
        last = mi == len(ms) - 1
        while used < (1 if last else 2) or (last and len(ms) == 3 and q and ndma):
            ok = q and ndma and not (q[0][0][0] == 'X' and q[0][0] not in [t for kk in range(k, min(NF, k + opts['XL'])) for t in rowsof(kk)]) and not (q[0][0][0] == 'W' and q[0][0][1] >= NSLOT and k < 2 * (q[0][0][1] - NSLOT) + 2 + DW % 2 - (DW // 2 - 1) * 0)
            if ok and (len(ms) <= 6 or mi % 2 == 0 or pre_done[0]):
                if q[0][1] and not pre_done[0]:
                    e(q[0][1][0]); pre_done[0] = True; used += 1
                    if not (last and len(ms) == 3): break
                else:
                    d = q.pop(0); emit((d[0], [], d[2])); pre_done[0] = False; ndma -= 1; used += 1
                    if len(ms) > 3: break
            elif pend:
                it = pend.pop(0)
                if it == '@9':
                    if gap_since[0] < 9: pend.insert(0, it); break
                    it = pend.pop(0)
                e(it); used += 1
                if 'store' in it: vm.append(('S', 0))
                break
            else: break
    for i in range(6):
        if cnt.get(i, 0) == 27 and i not in done:
            if not any(p.startswith('v_cvt') or True for p in pend): delay = opts['EDEL']
            else: delay = max(delay, 1)
            pend += ['@9'] + epi(i); done.add(i); gap_since[0] = 0
assert not pend and not q
stamp()
e('s_nop 7')
for it in epi(6):
    if 'permlane16_swap_b32 v%d,' % CV in it: e('s_nop 0')
    e(it)
if STAMP:
    e('s_waitcnt vmcnt(0)')
    stamp()
    e('s_memrealtime s[82:83]')
    e('s_waitcnt lgkmcnt(0)')
    e(f's_cmp_lg_u32 s3, 0'); e('s_cbranch_scc1 L_end')
    e(f's_and_b32 s43, s2, 31'); e(f's_cmp_lg_u32 s43, 5'); e('s_cbranch_scc1 L_end')
    e(f's_lshr_b32 s43, s2, 5'); e(f's_lshl_b32 s43, s43, 5')
    assert nst[0] <= 7
    for k in range(1, nst[0]):
        e(f's_sub_u32 s44, s{sST+2*k}, s{sST}')
        e(f'v_mov_b32 v16, s44'); e('v_mov_b32 v17, 0')
        e(f'buffer_store_dword v16, v17, s[{sDBG}:{sDBG+3}], s43 offen offset:{4*(k-1)}')
    for k in range(2):
        e(f's_and_b32 s44, s{80+2*k}, 0xfffff')
        e(f'v_mov_b32 v16, s44'); e('v_mov_b32 v17, 0')
        e(f'buffer_store_dword v16, v17, s[{sDBG}:{sDBG+3}], s43 offen offset:{24+4*k}')
lab('L_end')
e('s_endpgm')
name = opts['name']
acc_off = (VEND + 3) // 4 * 4
hdr = f'''; circular 3x3 conv (== rfft2/irfft2 conv) as implicit GEMM on bf16 MFMA; generated by gen/gen3.py
; @launch grid=(224,1,1) block=(256,1,1) lds={LDS}
.amdgcn_target "amdgcn-amd-amdhsa--gfx950"
.text
.globl {name}_kernel
.p2align 8
.type {name}_kernel,@function
{name}_kernel:
'''
ftr = f'''.section .rodata,"a"
.p2align 6
.amdhsa_kernel {name}_kernel
  .amdhsa_next_free_vgpr {acc_off + 252}
  .amdhsa_next_free_sgpr 102
  .amdhsa_accum_offset {acc_off}
  .amdhsa_group_segment_fixed_size 0
  .amdhsa_kernarg_size 40
  .amdhsa_user_sgpr_count 2
  .amdhsa_user_sgpr_kernarg_segment_ptr 1
  .amdhsa_system_sgpr_workgroup_id_x 1
.end_amdhsa_kernel
'''
open(sys.argv[1], 'w').write(hdr + '\n'.join(L) + '\n' + ftr)
```

```python
import sys
opts = dict(STAMP=0, NT=0, SC=1, PRE=24, RATE=3, CPF=1, WPF=1, SW=1, XFIRST=1, B2=42, EDEL=9, XL=99, XROW=4096, CST=40, WLATE=1, TR=1, DW=3, HY=1, XG=5, CPOS=0, name='standalone__fft_conv__vision')
for a in sys.argv[2:]:
    k, v = a.split('=')
    opts[k] = int(v) if v.lstrip('-').isdigit() else v
STAMP = opts['STAMP']; SW = opts['SW']
L = []
def e(s): L.append('    ' + s)
def lab(s): L.append(s + ':')
XROW = opts['XROW']; XB = 0; WB = 16 * XROW; NSLOT = 8
LDS = WB + NSLOT * 12288
vXA = [1, 2, 3]; vWA = [4, 5, 6]; vWB_ = [7, 8, 9]; vGX = 10; vGW = [11, 12, 13]; vOUT = 14; vOUT2 = 15
ACC = 24; NACC = 5
XR = ACC + 12 * NACC; NXR = 2 * opts['DW'] + 2
CV = XR + 4 * NXR
WV = CV + 16
VEND = WV + 72
def wreg(s, t):
    if s < 21: return ('a', (s * 3 + t) * 4)
    return ('v', WV + ((s - 21) * 3 + t) * 4)
def rr(k, b, n): return f'{k}[{b}:{b+n-1}]'
sX = 8; sW = 12; sO = 16; sDBG = 20; sROW = 24
sXM = 40; sWM = 41; sOB = 42; sTMP = 43; sST = 48
nst = [0]
def stamp():
    if STAMP:
        e(f's_mem{"real" if STAMP==2 else ""}time s[{sST+2*nst[0]}:{sST+2*nst[0]+1}]'); nst[0] += 1
vm = []
def dmaW(r):
    so = f's{64 + r}' if r else '0'
    return [(('W', r), [f's_add_u32 m0, s{sWM}, {(r % NSLOT) * 12288}'] if i == 0 else [],
             f'buffer_load_dwordx4 v{vGW[i]}, s[{sW}:{sW+3}], {so} offen offset:{1024*i} lds') for i in range(3)]
def dmaX(rho):
    return [(('X', rho), [f's_add_u32 m0, s{sXM}, {XB + rho * XROW}'],
             f'buffer_load_dwordx4 v{vGX}, s[{sX}:{sX+3}], s{sROW+rho} offen lds')]
inited = set([('W', 0), ('X', 2)])
def sinit(t):
    if t in inited: return
    inited.add(t)
    if t[0] == 'W': e(f's_mov_b32 s{64 + t[1]}, {t[1] * 12288}')
    else: assert t[1] > 2; e(f's_add_u32 s{sROW+t[1]}, s{sROW+2}, {43008*(t[1]-2)}')
def emit(d):
    for p in d[1]: e(p)
    sinit(d[0])
    if L[-1].strip().startswith('s_add_u32 m0'): e('s_nop 0')
    vm.append(d[0]); e(d[2])
def vmcount(tags):
    idx = max(k for k, t in enumerate(vm) if t in tags)
    n = len(vm) - 1 - idx
    assert n < 64
    return n
def xp(r): return [x for o in (7, 0) for x in dmaX(r + o)] if r >= 2 else dmaX(r)
def xt(r): return [('X', r + 7), ('X', r)]
e(f's_load_dwordx2 s[{sX}:{sX+1}], s[0:1], 0')
e(f's_load_dwordx2 s[{sW}:{sW+1}], s[0:1], 8')
if STAMP: e('s_load_dwordx2 s[90:91], s[0:1], 24')
stamp()
if STAMP: e('s_memrealtime s[80:81]')
e('s_cmpk_ge_u32 s2, 224')
e('s_cbranch_scc1 L_end')
e('s_getpc_b64 s[88:89]')
lab('L_pc')
e(f"v_mul_u32_u24 v22, {opts['CST']}, v0")
e('global_load_dword v23, v22, s[88:89]'); vm.append(('C', 0))
e('v_readfirstlane_b32 s3, v0')
e('s_lshr_b32 s45, s2, 3')
e('s_and_b32 s43, s2, 7')
e('s_cmp_ge_u32 s45, 14')
e('s_cselect_b32 s44, 14, 0')
e('s_sub_u32 s47, s45, s44')
e('s_mul_i32 s46, s43, 28')
e('s_add_u32 s46, s46, s44')
e('s_mulk_i32 s47, 3072')
e('s_addk_i32 s47, -384')
if XROW == 4096:
    e(f's_lshl_b32 s{sXM}, s3, 4')
    u = 'v0'
else:
    e('s_min_u32 s44, s3, 152')
    e(f's_lshl_b32 s{sXM}, s44, 4')
    e('s_sub_u32 s44, s44, s3')
    e('v_add_u32 v18, s44, v0')
    u = 'v18'
e(f'v_lshrrev_b32 v17, 4, {u}')
e('v_mul_u32_u24 v17, 43, v17')
e('v_lshrrev_b32 v17, 6, v17')
e('v_and_b32 v17, 2, v17')
e(f'v_xor_b32 v16, {u}, v17')
e('v_lshl_add_u32 v16, v16, 4, s47')
e('v_add_u32 v17, 43008, v16')
e(f'v_min_u32 v{vGX}, v16, v17')
e(f's_mul_i32 s{sROW+2}, s46, 43008')
e(f's_mov_b32 s{sX+2}, 9633792'); e(f's_mov_b32 s{sX+3}, 0x20000')
def wsetup():
    e(f's_load_dwordx2 s[{sO}:{sO+1}], s[0:1], 16')
    e('v_and_b32 v0, 63, v0')
    e(f'v_lshlrev_b32 v16, 4, v0')
    e(f'v_and_b32 v17, 32, v0')
    e('s_mul_i32 s44, s3, 48')
    e(f's_add_u32 s{sWM}, s44, {WB}')
    e(f'v_add_u32 v{vGW[0]}, s44, v16')
    e(f'v_xor_b32 v{vGW[2]}, 32, v{vGW[0]}')
    e(f'v_xor_b32 v{vGW[1]}, v17, v{vGW[0]}')
    e(f's_mov_b32 s{sW+2}, 165888'); e(f's_mov_b32 s{sW+3}, s{sX+3}')
def wpfsetup():
    e('s_mulk_i32 s45, 47*128')
    e('s_mul_i32 s44, s3, 24')
    e('s_add_u32 s45, s45, s44')
    e('v_min_u32 v21, 11, v0')
    e('v_lshl_add_u32 v21, v21, 7, s45')
e('s_waitcnt lgkmcnt(0)')
if STAMP >= 3: stamp()
if opts['HY']:
    q = xp(8) + xp(7) + dmaW(0) + dmaW(1) + dmaW(2) + dmaW(3) + xp(6) + dmaW(4) + dmaW(5) + dmaW(6) + dmaW(7) + xp(5)
    for r in range(8, 14): q += dmaW(r)
    for r in range(4, -1, -1): q += xp(r)
else:
    q = xp(8) + dmaW(0) + dmaW(1) + dmaW(2) + dmaW(3) + xp(7) + dmaW(4) + dmaW(5) + dmaW(6) + dmaW(7) + xp(6)
    for r in range(8, 14): q += dmaW(r)
    for r in range(5, -1, -1): q += xp(r)
N0 = 7 if opts['HY'] else 5
for d in q[:N0 - 3]: emit(d)
wsetup()
for d in q[N0 - 3:N0]: emit(d)

if opts['WPF']:
    wpfsetup()
    e(f'buffer_load_dword v23, v21, s[{sW}:{sW+3}], 0 offen'); vm.append(('P', 0))
for d in q[N0:opts['PRE']]: emit(d)
q = q[opts['PRE']:]
for r in range(1, 14): sinit(('W', r))
for r in range(3, 16): sinit(('X', r))
inited.add(('X', 0)); inited.add(('X', 1))
e(f's_add_u32 s45, s46, 222')
e(f's_cmp_ge_u32 s45, 224')
e(f's_cselect_b32 s44, 224, 0')
e(f's_sub_u32 s45, s45, s44')
e(f's_mul_i32 s{sROW}, s45, 43008')
e(f's_add_u32 s{sROW+1}, s{sROW}, 43008')
if STAMP:
    e(f's_mov_b32 s{sDBG}, s90'); e(f's_and_b32 s{sDBG+1}, s91, 0xffff'); e(f's_mov_b32 s{sDBG+2}, 256'); e(f's_mov_b32 s{sDBG+3}, 0x20000')
e(f's_mov_b32 s{sO+2}, s{sX+2}'); e(f's_mov_b32 s{sO+3}, s{sX+3}')
e('s_lshr_b32 s3, s3, 6')
e('s_addk_i32 s47, 384')
e('v_and_b32 v16, 15, v0')
e('v_lshrrev_b32 v17, 4, v0')
e('s_lshr_b32 s86, s3, 1')
e('s_and_b32 s45, s3, 1')
e(f's_xor_b32 s43, s86, 1')
e(f's_mul_i32 s87, s43, 7')
e(f's_mul_i32 s43, s87, {XROW}')
for kw in range(3):
    e(f'v_add_u32 v18, {2-kw}, v16')
    e('v_lshrrev_b32 v19, 1, v18')
    e('v_and_b32 v19, 2, v19')
    e('v_xor_b32 v19, v19, v17')
    e('v_mul_u32_u24 v18, 192, v18')
    e('v_lshl_add_u32 v18, v19, 4, v18')
    e(f'v_add_u32 v{vXA[kw]}, s43, v18')
e('v_lshrrev_b32 v18, 2, v16')
e('v_lshl_add_u32 v18, v17, 3, v18')
e('v_mul_u32_u24 v18, 192, v18')
e(f'v_add_u32 v18, {WB}, v18')
e('v_and_b32 v19, 3, v0')
e('v_and_b32 v20, 1, v17')
e('v_lshlrev_b32 v20, 5, v20')
if SW:
    e('s_lshl_b32 s43, s45, 7')
    e('s_lshl_b32 s44, s45, 5')
    e('s_add_u32 s44, s44, 64')
    e('v_lshlrev_b32 v19, 3, v19')
    for t in range(3):
        if t < 2: e(f'v_add3_u32 v21, v19, {32*t}, s43')
        else: e('v_add_u32 v21, s44, v19')
        e('v_xor_b32 v21, v21, v20')
        e(f'v_add_u32 v{vWA[t]}, v21, v18')
        e(f'v_add_u32 v{vWB_[t]}, 61440, v{vWA[t]}')
    e('v_mul_u32_u24 v18, 192, v16')
    e('v_lshrrev_b32 v19, 1, v17')
    e('v_lshl_add_u32 v19, v19, 4, v20')
    e(f'v_add3_u32 v{vOUT}, v18, v19, s43')
    e('v_lshl_add_u32 v18, v17, 3, v18')
    e(f'v_add_u32 v{vOUT2}, s44, v18')
else:
    e('v_mul_u32_u24 v19, 24, v19')
    e('s_mul_i32 s43, s45, 96')
    e('v_add_u32 v19, s43, v19')
    for t in range(3):
        e(f'v_add_u32 v21, {8*t}, v19')
        e('v_xor_b32 v21, v21, v20')
        e(f'v_add_u32 v{vWA[t]}, v21, v18')
        e(f'v_add_u32 v{vWB_[t]}, 61440, v{vWA[t]}')
    e('v_mul_u32_u24 v18, 192, v16')
    e('v_mul_u32_u24 v19, 24, v17')
    e(f'v_add3_u32 v{vOUT}, v18, v19, s43')
    e(f'v_add_u32 v{vOUT2}, 16, v{vOUT}')
e('s_add_u32 s43, s46, s87')
e('s_mul_i32 s43, s43, 43008')
e(f's_add_u32 s{sOB}, s43, s47')
F = []
HY = opts['HY']
def alluses(row): return [(8 - row - kh, kh) for kh in range(3) if 0 <= 8 - row - kh <= 6]
fidx = 0
for st in range(9 if not HY else 8):
    for kw in range(3):
        for j in range(3):
            if HY and st < 3:
                fr = [(7 - st, [u for u in alluses(7 - st) if u[1] <= st]), (8 - st, [(0, st)])]
            else:
                row = 8 - st - (1 if HY else 0); fr = [(row, alluses(row))]
            F.append([(row, kw, j, uses, fidx + n) for n, (row, uses) in enumerate(fr)]); fidx += len(fr)
if opts['TR']:
    G = []; tail = []
    for fr in F:
        (row, kw, j, uses, fi) = fr[0]
        if len(fr) == 1 and row <= 2:
            u = [x for x in uses if x[0] != 6]
            if u: G.append([(row, kw, j, u, 0)])
            tail.append([(row, kw, j, [x for x in uses if x[0] == 6], 0)])
        else: G.append(fr)
    F = []; fidx = 0
    for fr in G + tail:
        F.append([f[:4] + (fidx + n,) for n, f in enumerate(fr)]); fidx += len(fr)
NF = len(F)
def rowsof(k): return [t for f in F[k] for t in xt(f[0])]
ds = []
def reads(k):
    out = []
    for (row, kw, j, _, fi) in F[k]:
        reg = XR + 4 * (fi % NXR)
        out.append((k, f'ds_read_b128 v[{reg}:{reg+3}], v{vXA[kw]} offset:{XB + row * XROW + j * 64}'))
    if k <= 26:
        slot = k % (2 * NSLOT)
        for t in range(3):
            kk, b = wreg(k, t)
            for h in range(2):
                off = slot * 6144 + h * 768; a = vWA[t]
                if slot >= 10: off -= 61440; a = vWB_[t]
                out.append((k, f'ds_read_b64_tr_b16 {rr(kk, b+2*h, 2)}, v{a} offset:{off}'))
    return out
def eds(r): ds.append(r[0]); e(r[1])
nt = (' nt' if opts['NT'] else '') + (' sc1' if opts['SC'] & 1 else '') + (' sc0' if opts['SC'] & 2 else '')
def epi(tile):
    acc = ACC + 12 * (tile % NACC); c = CV + 8 * (tile % 2)
    out = []
    for t in range(3):
        out.append(f'v_cvt_pk_bf16_f32 v{c+2*t}, v{acc+4*t}, v{acc+4*t+1}')
        out.append(f'v_cvt_pk_bf16_f32 v{c+2*t+1}, v{acc+4*t+2}, v{acc+4*t+3}')
    out.append(f's_add_u32 s{sTMP}, s{sOB}, {(6-tile)*43008}')
    st4 = f'buffer_store_dwordx4 v[{c}:{c+3}], v{vOUT}, s[{sO}:{sO+3}], s{sTMP} offen{nt}'
    st2 = f'buffer_store_dwordx2 v[{c+4}:{c+5}], v{vOUT2}, s[{sO}:{sO+3}], s{sTMP} offen{nt}'
    if SW: out += [f'v_permlane16_swap_b32 v{c}, v{c+2}', f'v_permlane16_swap_b32 v{c+1}, v{c+3}', st2, st4]
    else: out += [st4, st2]
    return out
covered = set()
def barrier(need, lg=None):
    global q
    need = [t for t in need if t not in covered]
    while not all(vm.count(t) == (3 if t[0] == 'W' else 1) for t in need):
        print('forced', q[0][0], file=sys.stderr); emit(q.pop(0)); pre_done[0] = False
    n = vmcount(need)
    for t in vm[:len(vm) - n]: covered.add(t)
    e(f's_waitcnt vmcnt({n})' + (f' lgkmcnt({lg})' if lg is not None else ''))
    e('s_barrier')
pre_done = [False]
e('s_waitcnt lgkmcnt(0)')
DW = opts['DW']
barrier([('W', r) for r in range((DW + 1) // 2)] + rowsof(0))
stamp()
for kk in range(DW):
    for r in reads(kk): eds(r)
nextrd = DW
pend = []; delay = 0; cnt = {}; done = set(); gap_since = [0]
B2 = opts['B2']
for k, frs in enumerate(F):
    if k == 27 or (STAMP == 1 and k in (9, 18)): stamp()
    idx = max(i for i, t in enumerate(ds) if t == k)
    lg = min(15, len(ds) - 1 - idx)
    if (k + DW) % 2 == 0 and k + DW <= 26:
        need = [('W', (k + DW) // 2)] + rowsof(k + DW + 1)
        barrier(need, lg)
    elif k + DW > 26 and k + 3 < NF and any(t not in covered for t in rowsof(k + 3)):
        r0 = F[k + 3][0][0]
        barrier([t for r in range(max(0, r0 - opts['XG'] + 1), r0 + 1) for t in xt(r)], lg)
    else: e(f's_waitcnt lgkmcnt({lg})')
    D = DW if k < 26 else 3
    rd = []
    while nextrd <= min(k + D, NF - 1):
        for t in rowsof(nextrd): assert t in covered, (k, t)
        rd += reads(nextrd); nextrd += 1
    ms = []
    for (row, kw, j, uses, fi) in frs:
        for (i, kh) in uses:
            for t in range(3):
                acc = ACC + 12 * (i % NACC) + 4 * t
                kk, b = wreg(kh * 9 + kw * 3 + j, t)
                c = f'v[{acc}:{acc+3}]' if cnt.get(i, 0) else '0'
                if not cnt.get(i, 0): assert not any(f'v{acc},' in p for p in pend)
                x = XR + 4 * (fi % NXR)
                ms.append(f'v_mfma_f32_16x16x32_bf16 v[{acc}:{acc+3}], {rr(kk,b,4)}, v[{x}:{x+3}], {c}')
            cnt[i] = cnt.get(i, 0) + 1
    ndma = opts['RATE']
    per = -(-len(rd) // len(ms))
    for mi, m in enumerate(ms):
        e(m); gap_since[0] += 1
        used = 0
        while rd and used < per: eds(rd.pop(0)); used += 1
        last = mi == len(ms) - 1
        while used < (1 if last else 2) or (last and len(ms) == 3 and q and ndma):
            ok = q and ndma and not (q[0][0][0] == 'X' and q[0][0] not in [t for kk in range(k, min(NF, k + opts['XL'])) for t in rowsof(kk)]) and not (q[0][0][0] == 'W' and q[0][0][1] >= NSLOT and k < 2 * (q[0][0][1] - NSLOT) + 2 + DW % 2 - (DW // 2 - 1) * 0)
            if ok and (len(ms) <= 6 or mi % 2 == 0 or pre_done[0]):
                if q[0][1] and not pre_done[0]:
                    e(q[0][1][0]); pre_done[0] = True; used += 1
                    if not (last and len(ms) == 3): break
                else:
                    d = q.pop(0); emit((d[0], [], d[2])); pre_done[0] = False; ndma -= 1; used += 1
                    if len(ms) > 3: break
            elif pend:
                it = pend.pop(0)
                if it == '@9':
                    if gap_since[0] < 9: pend.insert(0, it); break
                    it = pend.pop(0)
                e(it); used += 1
                if 'store' in it: vm.append(('S', 0))
                break
            else: break
    for i in range(6):
        if cnt.get(i, 0) == 27 and i not in done:
            if not any(p.startswith('v_cvt') or True for p in pend): delay = opts['EDEL']
            else: delay = max(delay, 1)
            pend += ['@9'] + epi(i); done.add(i); gap_since[0] = 0
assert not pend and not q
stamp()
e('s_nop 7')
for it in epi(6):
    if 'permlane16_swap_b32 v%d,' % CV in it: e('s_nop 0')
    e(it)
if STAMP:
    e('s_waitcnt vmcnt(0)')
    stamp()
    e('s_memrealtime s[82:83]')
    e('s_waitcnt lgkmcnt(0)')
    e(f's_cmp_lg_u32 s3, 0'); e('s_cbranch_scc1 L_end')
    e(f's_and_b32 s43, s2, 31'); e(f's_cmp_lg_u32 s43, 5'); e('s_cbranch_scc1 L_end')
    e(f's_lshr_b32 s43, s2, 5'); e(f's_lshl_b32 s43, s43, 5')
    assert nst[0] <= 7
    for k in range(1, nst[0]):
        e(f's_sub_u32 s44, s{sST+2*k}, s{sST}')
        e(f'v_mov_b32 v16, s44'); e('v_mov_b32 v17, 0')
        e(f'buffer_store_dword v16, v17, s[{sDBG}:{sDBG+3}], s43 offen offset:{4*(k-1)}')
    for k in range(2):
        e(f's_and_b32 s44, s{80+2*k}, 0xfffff')
        e(f'v_mov_b32 v16, s44'); e('v_mov_b32 v17, 0')
        e(f'buffer_store_dword v16, v17, s[{sDBG}:{sDBG+3}], s43 offen offset:{24+4*k}')
lab('L_end')
e('s_endpgm')
L.append(f".if (. - L_pc) < {opts['CST']*256}\n.fill ({opts['CST']*256} - (. - L_pc))/4, 4, 0xBF810000\n.endif")
L.append(f".if (L_end - L_pc) > {opts['CST']*256+64}\n.error \"code larger than prefetch range\"\n.endif")
name = opts['name']
acc_off = (VEND + 3) // 4 * 4
hdr = f'''; circular 3x3 conv (== rfft2/irfft2 conv) as implicit GEMM on bf16 MFMA; generated by gen/gen4.py
; @launch grid=(224,1,1) block=(256,1,1) lds={LDS}
.amdgcn_target "amdgcn-amd-amdhsa--gfx950"
.text
.globl {name}_kernel
.p2align 8
.type {name}_kernel,@function
{name}_kernel:
'''
ftr = f'''.section .rodata,"a"
.p2align 6
.amdhsa_kernel {name}_kernel
  .amdhsa_next_free_vgpr {acc_off + 252}
  .amdhsa_next_free_sgpr 102
  .amdhsa_accum_offset {acc_off}
  .amdhsa_group_segment_fixed_size 0
  .amdhsa_kernarg_size 40
  .amdhsa_user_sgpr_count 2
  .amdhsa_user_sgpr_kernarg_segment_ptr 1
  .amdhsa_system_sgpr_workgroup_id_x 1
.end_amdhsa_kernel
'''
open(sys.argv[1], 'w').write(hdr + '\n'.join(L) + '\n' + ftr)
```

```python
import sys
opts = dict(STAMP=0, NT=0, SC=1, PRE=24, RATE=3, CPF=1, WPF=1, SW=1, XFIRST=1, B2=42, EDEL=9, XL=99, XROW=4096, CST=40, WLATE=1, TR=1, DW=3, HY=1, XG=5, CPOS=0, FAKE2=0, EX=1, name='standalone__fft_conv__vision')
for a in sys.argv[2:]:
    k, v = a.split('=')
    opts[k] = int(v) if v.lstrip('-').isdigit() else v
STAMP = opts['STAMP']; SW = opts['SW']
L = []
def e(s): L.append('    ' + s)
def lab(s): L.append(s + ':')
XROW = opts['XROW']; XB = 0; WB = 16 * XROW; NSLOT = 8
LDS = WB + NSLOT * 12288
vXA = [1, 2, 3]; vWA = [4, 5, 6]; vWB_ = [7, 8, 9]; vGX = 10; vGW = [11, 12, 13]; vOUT = 14; vOUT2 = 15
ACC = 24; NACC = 5
XR = ACC + 12 * NACC; NXR = 2 * opts['DW'] + 2
CV = XR + 4 * NXR
WV = CV + 16
VEND = WV + 72
def wreg(s, t):
    if s < 21: return ('a', (s * 3 + t) * 4)
    return ('v', WV + ((s - 21) * 3 + t) * 4)
def rr(k, b, n): return f'{k}[{b}:{b+n-1}]'
sX = 8; sW = 12; sO = 16; sDBG = 20; sROW = 24
sXM = 40; sWM = 41; sOB = 42; sTMP = 43; sST = 48
nst = [0]
def stamp():
    if STAMP:
        e(f's_mem{"real" if STAMP==2 else ""}time s[{sST+2*nst[0]}:{sST+2*nst[0]+1}]'); nst[0] += 1
vm = []
def dmaW(r):
    so = f's{64 + r}' if r else '0'
    return [(('W', r), [f's_add_u32 m0, s{sWM}, {(r % NSLOT) * 12288}'] if i == 0 else [],
             f'buffer_load_dwordx4 v{vGW[i]}, s[{sW}:{sW+3}], {so} offen offset:{1024*i} lds') for i in range(3)]
def dmaX(rho):
    return [(('X', rho), [f's_add_u32 m0, s{sXM}, {XB + rho * XROW}'],
             f'buffer_load_dwordx4 v{vGX}, s[{sX}:{sX+3}], s{sROW+rho} offen lds')]
inited = set([('W', 0), ('X', 2)])
def sinit(t):
    if t in inited: return
    inited.add(t)
    if t[0] == 'W': e(f's_mov_b32 s{64 + t[1]}, {t[1] * 12288}')
    else: assert t[1] > 2; e(f's_add_u32 s{sROW+t[1]}, s{sROW+2}, {43008*(t[1]-2)}')
def emit(d):
    for p in d[1]: e(p)
    sinit(d[0])
    if L[-1].strip().startswith('s_add_u32 m0'): e('s_nop 0')
    vm.append(d[0]); e(d[2])
def vmcount(tags):
    idx = max(k for k, t in enumerate(vm) if t in tags)
    n = len(vm) - 1 - idx
    assert n < 64
    return n
def xp(r): return [x for o in (7, 0) for x in dmaX(r + o)] if r >= 2 else dmaX(r)
def xt(r): return [('X', r + 7), ('X', r)]
e(f's_load_dwordx2 s[{sX}:{sX+1}], s[0:1], 0')
e(f's_load_dwordx2 s[{sW}:{sW+1}], s[0:1], 8')
if STAMP: e('s_load_dwordx2 s[90:91], s[0:1], 24')
stamp()
if STAMP: e('s_memrealtime s[80:81]')
e('s_cmpk_ge_u32 s2, 224')
e('s_cbranch_scc1 L_end')
e('s_getpc_b64 s[88:89]')
lab('L_pc')
e(f"v_mul_u32_u24 v22, {opts['CST']}, v0")
e('global_load_dword v23, v22, s[88:89]'); vm.append(('C', 0))
e('v_readfirstlane_b32 s3, v0')
e('s_lshr_b32 s45, s2, 3')
e('s_and_b32 s43, s2, 7')
e('s_cmp_ge_u32 s45, 14')
e('s_cselect_b32 s44, 14, 0')
e('s_sub_u32 s47, s45, s44')
e('s_mul_i32 s46, s43, 28')
e('s_add_u32 s46, s46, s44')
e('s_mulk_i32 s47, 3072')
e('s_addk_i32 s47, -384')
if XROW == 4096:
    e(f's_lshl_b32 s{sXM}, s3, 4')
    u = 'v0'
else:
    e('s_min_u32 s44, s3, 152')
    e(f's_lshl_b32 s{sXM}, s44, 4')
    e('s_sub_u32 s44, s44, s3')
    e('v_add_u32 v18, s44, v0')
    u = 'v18'
e(f'v_lshrrev_b32 v17, 4, {u}')
e('v_mul_u32_u24 v17, 43, v17')
e('v_lshrrev_b32 v17, 6, v17')
e('v_and_b32 v17, 2, v17')
e(f'v_xor_b32 v16, {u}, v17')
e('v_lshl_add_u32 v16, v16, 4, s47')
e('v_add_u32 v17, 43008, v16')
e(f'v_min_u32 v{vGX}, v16, v17')
e(f's_mul_i32 s{sROW+2}, s46, 43008')
e(f's_mov_b32 s{sX+2}, 9633792'); e(f's_mov_b32 s{sX+3}, 0x20000')
def wsetup():
    e(f's_load_dwordx2 s[{sO}:{sO+1}], s[0:1], 16')
    e('v_and_b32 v0, 63, v0')
    e(f'v_lshlrev_b32 v16, 4, v0')
    e(f'v_and_b32 v17, 32, v0')
    e('s_mul_i32 s44, s3, 48')
    e(f's_add_u32 s{sWM}, s44, {WB}')
    e(f'v_add_u32 v{vGW[0]}, s44, v16')
    e(f'v_xor_b32 v{vGW[2]}, 32, v{vGW[0]}')
    e(f'v_xor_b32 v{vGW[1]}, v17, v{vGW[0]}')
    e(f's_mov_b32 s{sW+2}, 165888'); e(f's_mov_b32 s{sW+3}, s{sX+3}')
def wpfsetup():
    e('s_mulk_i32 s45, 47*128')
    e('s_mul_i32 s44, s3, 24')
    e('s_add_u32 s45, s45, s44')
    e('v_min_u32 v21, 11, v0')
    e('v_lshl_add_u32 v21, v21, 7, s45')
e('s_waitcnt lgkmcnt(0)')
if STAMP >= 3: stamp()
if opts['HY']:
    q = xp(8) + xp(7) + dmaW(0) + dmaW(1) + dmaW(2) + dmaW(3) + xp(6) + dmaW(4) + dmaW(5) + dmaW(6) + dmaW(7) + xp(5)
    for r in range(8, 14): q += dmaW(r)
    for r in range(4, -1, -1): q += xp(r)
else:
    q = xp(8) + dmaW(0) + dmaW(1) + dmaW(2) + dmaW(3) + xp(7) + dmaW(4) + dmaW(5) + dmaW(6) + dmaW(7) + xp(6)
    for r in range(8, 14): q += dmaW(r)
    for r in range(5, -1, -1): q += xp(r)
N0 = 7 if opts['HY'] else 5
for d in q[:N0 - 3]: emit(d)
wsetup()
for d in q[N0 - 3:N0]: emit(d)

if opts['WPF']:
    wpfsetup()
    e(f'buffer_load_dword v23, v21, s[{sW}:{sW+3}], 0 offen'); vm.append(('P', 0))
for d in q[N0:opts['PRE']]: emit(d)
q = q[opts['PRE']:]
for r in range(1, 14): sinit(('W', r))
for r in range(3, 16): sinit(('X', r))
inited.add(('X', 0)); inited.add(('X', 1))
e(f's_add_u32 s45, s46, 222')
e(f's_cmp_ge_u32 s45, 224')
e(f's_cselect_b32 s44, 224, 0')
e(f's_sub_u32 s45, s45, s44')
e(f's_mul_i32 s{sROW}, s45, 43008')
e(f's_add_u32 s{sROW+1}, s{sROW}, 43008')
if STAMP:
    e(f's_mov_b32 s{sDBG}, s90'); e(f's_and_b32 s{sDBG+1}, s91, 0xffff'); e(f's_mov_b32 s{sDBG+2}, 256'); e(f's_mov_b32 s{sDBG+3}, 0x20000')
e(f's_mov_b32 s{sO+2}, s{sX+2}'); e(f's_mov_b32 s{sO+3}, s{sX+3}')
e('s_lshr_b32 s3, s3, 6')
e('s_addk_i32 s47, 384')
e('v_and_b32 v16, 15, v0')
e('v_lshrrev_b32 v17, 4, v0')
e('s_lshr_b32 s86, s3, 1')
e('s_and_b32 s45, s3, 1')
e(f's_xor_b32 s43, s86, 1')
e(f's_mul_i32 s87, s43, 7')
e(f's_mul_i32 s43, s87, {XROW}')
for kw in range(3):
    e(f'v_add_u32 v18, {2-kw}, v16')
    e('v_lshrrev_b32 v19, 1, v18')
    e('v_and_b32 v19, 2, v19')
    e('v_xor_b32 v19, v19, v17')
    e('v_mul_u32_u24 v18, 192, v18')
    e('v_lshl_add_u32 v18, v19, 4, v18')
    e(f'v_add_u32 v{vXA[kw]}, s43, v18')
e('v_lshrrev_b32 v18, 2, v16')
e('v_lshl_add_u32 v18, v17, 3, v18')
e('v_mul_u32_u24 v18, 192, v18')
e(f'v_add_u32 v18, {WB}, v18')
e('v_and_b32 v19, 3, v0')
e('v_and_b32 v20, 1, v17')
e('v_lshlrev_b32 v20, 5, v20')
if SW:
    e('s_lshl_b32 s43, s45, 7')
    e('s_lshl_b32 s44, s45, 5')
    e('s_add_u32 s44, s44, 64')
    e('v_lshlrev_b32 v19, 3, v19')
    for t in range(3):
        if t < 2: e(f'v_add3_u32 v21, v19, {32*t}, s43')
        else: e('v_add_u32 v21, s44, v19')
        e('v_xor_b32 v21, v21, v20')
        e(f'v_add_u32 v{vWA[t]}, v21, v18')
        e(f'v_add_u32 v{vWB_[t]}, 61440, v{vWA[t]}')
    e('v_mul_u32_u24 v18, 192, v16')
    e('v_lshrrev_b32 v19, 1, v17')
    e('v_lshl_add_u32 v19, v19, 4, v20')
    e(f'v_add3_u32 v{vOUT}, v18, v19, s43')
    e('v_lshl_add_u32 v18, v17, 3, v18')
    e(f'v_add_u32 v{vOUT2}, s44, v18')
    if opts['FAKE2']:
        e('v_and_b32 v18, 14, v16'); e('v_add_u32 v18, s45, v18'); e('v_mul_u32_u24 v18, 192, v18')
        e('v_and_b32 v19, 1, v16'); e('v_lshlrev_b32 v19, 5, v19'); e('v_lshl_add_u32 v19, v17, 3, v19')
        e(f'v_add3_u32 v{vOUT2}, v18, v19, 64')
else:
    e('v_mul_u32_u24 v19, 24, v19')
    e('s_mul_i32 s43, s45, 96')
    e('v_add_u32 v19, s43, v19')
    for t in range(3):
        e(f'v_add_u32 v21, {8*t}, v19')
        e('v_xor_b32 v21, v21, v20')
        e(f'v_add_u32 v{vWA[t]}, v21, v18')
        e(f'v_add_u32 v{vWB_[t]}, 61440, v{vWA[t]}')
    e('v_mul_u32_u24 v18, 192, v16')
    e('v_mul_u32_u24 v19, 24, v17')
    e(f'v_add3_u32 v{vOUT}, v18, v19, s43')
    e(f'v_add_u32 v{vOUT2}, 16, v{vOUT}')
EX = opts['EX']; vOUT3 = 18; vER = 19; vEW = 20; EB = WB + 6 * 12288
if EX:
    e('v_and_b32 v21, 14, v16'); e('v_add_u32 v21, s45, v21')
    e('v_and_b32 v22, 1, v16')
    e('v_mul_u32_u24 v18, 192, v21'); e('v_lshl_add_u32 v18, v22, 5, v18'); e('v_lshl_add_u32 v18, v17, 3, v18')
    e(f'v_add_u32 v{vOUT3}, 64, v18')
    e('s_mul_i32 s43, s86, 1040'); e(f's_add_u32 s43, s43, {EB}')
    e('v_lshl_add_u32 v21, v17, 4, v21'); e('v_mul_u32_u24 v22, 520, v22')
    e('v_lshl_add_u32 v21, v21, 3, v22'); e(f'v_add_u32 v{vER}, s43, v21')
    e('s_mul_i32 s44, s45, 520'); e('s_add_u32 s43, s43, s44')
    e(f'v_lshl_add_u32 v{vEW}, v0, 3, s43')
e('s_add_u32 s43, s46, s87')
e('s_mul_i32 s43, s43, 43008')
e(f's_add_u32 s{sOB}, s43, s47')
F = []
HY = opts['HY']
def alluses(row): return [(8 - row - kh, kh) for kh in range(3) if 0 <= 8 - row - kh <= 6]
fidx = 0
for st in range(9 if not HY else 8):
    for kw in range(3):
        for j in range(3):
            if HY and st < 3:
                fr = [(7 - st, [u for u in alluses(7 - st) if u[1] <= st]), (8 - st, [(0, st)])]
            else:
                row = 8 - st - (1 if HY else 0); fr = [(row, alluses(row))]
            F.append([(row, kw, j, uses, fidx + n) for n, (row, uses) in enumerate(fr)]); fidx += len(fr)
if opts['TR']:
    G = []; tail = []
    for fr in F:
        (row, kw, j, uses, fi) = fr[0]
        if len(fr) == 1 and row <= 2:
            u = [x for x in uses if x[0] != 6]
            if u: G.append([(row, kw, j, u, 0)])
            tail.append([(row, kw, j, [x for x in uses if x[0] == 6], 0)])
        else: G.append(fr)
    F = []; fidx = 0
    for fr in G + tail:
        F.append([f[:4] + (fidx + n,) for n, f in enumerate(fr)]); fidx += len(fr)
NF = len(F)
def rowsof(k): return [t for f in F[k] for t in xt(f[0])]
ds = []
def reads(k):
    out = []
    for (row, kw, j, _, fi) in F[k]:
        reg = XR + 4 * (fi % NXR)
        out.append((k, f'ds_read_b128 v[{reg}:{reg+3}], v{vXA[kw]} offset:{XB + row * XROW + j * 64}'))
    if k <= 26:
        slot = k % (2 * NSLOT)
        for t in range(3):
            kk, b = wreg(k, t)
            for h in range(2):
                off = slot * 6144 + h * 768; a = vWA[t]
                if slot >= 10: off -= 61440; a = vWB_[t]
                out.append((k, f'ds_read_b64_tr_b16 {rr(kk, b+2*h, 2)}, v{a} offset:{off}'))
    return out
def eds(r): ds.append(r[0]); e(r[1])
nt = (' nt' if opts['NT'] else '') + (' sc1' if opts['SC'] & 1 else '') + (' sc0' if opts['SC'] & 2 else '')
def epi(tile):
    acc = ACC + 12 * (tile % NACC); c = CV + 8 * (tile % 2)
    out = []
    for t in range(3):
        out.append(f'v_cvt_pk_bf16_f32 v{c+2*t}, v{acc+4*t}, v{acc+4*t+1}')
        out.append(f'v_cvt_pk_bf16_f32 v{c+2*t+1}, v{acc+4*t+2}, v{acc+4*t+3}')
    out.append(f's_add_u32 s{sTMP}, s{sOB}, {(6-tile)*43008}')
    st4 = f'buffer_store_dwordx4 v[{c}:{c+3}], v{vOUT}, s[{sO}:{sO+3}], s{sTMP} offen{nt}'
    st2 = f'buffer_store_dwordx2 v[{c+4}:{c+5}], v{vOUT2}, s[{sO}:{sO+3}], s{sTMP} offen{nt}'
    if EX and tile < 6:
        out += [f'ds_write_b64 v{vEW}, v[{c+4}:{c+5}] offset:{tile*2080}', f'v_permlane16_swap_b32 v{c}, v{c+2}', f'v_permlane16_swap_b32 v{c+1}, v{c+3}', st4]
    elif SW: out += [f'v_permlane16_swap_b32 v{c}, v{c+2}', f'v_permlane16_swap_b32 v{c+1}, v{c+3}', st2, st4]
    else: out += [st4, st2]
    return out
covered = set()
def barrier(need, lg=None):
    global q
    need = [t for t in need if t not in covered]
    while not all(vm.count(t) == (3 if t[0] == 'W' else 1) for t in need):
        print('forced', q[0][0], file=sys.stderr); emit(q.pop(0)); pre_done[0] = False
    n = vmcount(need)
    for t in vm[:len(vm) - n]: covered.add(t)
    e(f's_waitcnt vmcnt({n})' + (f' lgkmcnt({lg})' if lg is not None else ''))
    e('s_barrier')
pre_done = [False]
e('s_waitcnt lgkmcnt(0)')
DW = opts['DW']
barrier([('W', r) for r in range((DW + 1) // 2)] + rowsof(0))
stamp()
for kk in range(DW):
    for r in reads(kk): eds(r)
nextrd = DW
pend = []; delay = 0; cnt = {}; done = set(); gap_since = [0]
B2 = opts['B2']
exb = set(); exs = set(); exreg = {}
def exdst(i):
    p = EX - 1 - i % EX
    if EX == 1: return CV + 8 * (i % 2) + 6
    return CV + 8 * (i % 2) + 4 if p == 0 else (CV + 14 if p == 1 else CV + 6)
for k, frs in enumerate(F):
    if k == 27 or (STAMP == 1 and k in (9, 18)): stamp()
    idx = max(i for i, t in enumerate(ds) if t == k)
    lg = min(15, len(ds) - 1 - idx)
    if (k + DW) % 2 == 0 and k + DW <= 26:
        need = [('W', (k + DW) // 2)] + rowsof(k + DW + 1)
        barrier(need, lg)
    elif k + DW > 26 and k + 3 < NF and any(t not in covered for t in rowsof(k + 3)):
        r0 = F[k + 3][0][0]
        barrier([t for r in range(max(0, r0 - opts['XG'] + 1), r0 + 1) for t in xt(r)], lg)
    else: e(f's_waitcnt lgkmcnt({lg})')
    if EX:
        for i in range(6):
            if ('ER', i) in ds[:idx + 1] and i not in exs:
                exs.add(i); r = exdst(i)
                pend += [f's_add_u32 s44, s{sOB}, {(6-i)*43008}', f'buffer_store_dwordx2 v[{r}:{r+1}], v{vOUT3}, s[{sO}:{sO+3}], s44 offen{nt}']
        for i in range(EX - 1, 6, EX):
            if ('EW', i) in ds[:idx + 1] and i not in exb:
                exb.add(i)
                if L[-1].strip() != 's_barrier': e('s_barrier')
                for i2 in range(i - EX + 1, i + 1):
                    r = exdst(i2); assert r not in exreg; exreg[r] = i2
                    pend.append(f'ds_read_b64 v[{r}:{r+1}], v{vER} offset:{i2*2080}')
    D = DW if k < 26 else 3
    rd = []
    while nextrd <= min(k + D, NF - 1):
        for t in rowsof(nextrd): assert t in covered, (k, t)
        rd += reads(nextrd); nextrd += 1
    ms = []
    for (row, kw, j, uses, fi) in frs:
        for (i, kh) in uses:
            for t in range(3):
                acc = ACC + 12 * (i % NACC) + 4 * t
                kk, b = wreg(kh * 9 + kw * 3 + j, t)
                c = f'v[{acc}:{acc+3}]' if cnt.get(i, 0) else '0'
                if not cnt.get(i, 0): assert not any(f'v{acc},' in p for p in pend)
                x = XR + 4 * (fi % NXR)
                ms.append(f'v_mfma_f32_16x16x32_bf16 v[{acc}:{acc+3}], {rr(kk,b,4)}, v[{x}:{x+3}], {c}')
            cnt[i] = cnt.get(i, 0) + 1
    ndma = opts['RATE']
    per = -(-len(rd) // len(ms))
    for mi, m in enumerate(ms):
        e(m); gap_since[0] += 1
        used = 0
        while rd and used < per: eds(rd.pop(0)); used += 1
        last = mi == len(ms) - 1
        while used < (1 if last else 2) or (last and len(ms) == 3 and q and ndma):
            ok = q and ndma and not (q[0][0][0] == 'X' and q[0][0] not in [t for kk in range(k, min(NF, k + opts['XL'])) for t in rowsof(kk)]) and not (q[0][0][0] == 'W' and q[0][0][1] >= NSLOT and k < 2 * (q[0][0][1] - NSLOT) + 2 + DW % 2 - (DW // 2 - 1) * 0)
            if ok and (len(ms) <= 6 or mi % 2 == 0 or pre_done[0]):
                if q[0][1] and not pre_done[0]:
                    e(q[0][1][0]); pre_done[0] = True; used += 1
                    if not (last and len(ms) == 3): break
                else:
                    d = q.pop(0); emit((d[0], [], d[2])); pre_done[0] = False; ndma -= 1; used += 1
                    if len(ms) > 3: break
            elif pend:
                it = pend.pop(0)
                if it == '@9':
                    if gap_since[0] < 9: pend.insert(0, it); break
                    it = pend.pop(0)
                e(it); used += 1
                if 'store' in it: vm.append(('S', 0))
                if it.startswith('ds_write'): ds.append(('EW', int(it.split(':')[-1]) // 2080))
                if it.startswith('ds_read'): ds.append(('ER', int(it.split(':')[-1]) // 2080))
                if f'v{vOUT3},' in it: del exreg[int(it.split('[')[1].split(':')[0])]
                if it.startswith('v_cvt'): assert int(it.split()[1][1:-1]) & ~1 not in exreg, it
                break
            else: break
    for i in range(6):
        if cnt.get(i, 0) == 27 and i not in done:
            if not any(p.startswith('v_cvt') or True for p in pend): delay = opts['EDEL']
            else: delay = max(delay, 1)
            pend += ['@9'] + epi(i); done.add(i); gap_since[0] = 0
assert not pend and not q and (not EX or (len(exs) == 6 and not exreg))
stamp()
e('s_nop 7')
for it in epi(6):
    if 'permlane16_swap_b32 v%d,' % CV in it: e('s_nop 0')
    e(it)
if STAMP:
    e('s_waitcnt vmcnt(0)')
    stamp()
    e('s_memrealtime s[82:83]')
    e('s_waitcnt lgkmcnt(0)')
    e(f's_cmp_lg_u32 s3, 0'); e('s_cbranch_scc1 L_end')
    e(f's_and_b32 s43, s2, 31'); e(f's_cmp_lg_u32 s43, 5'); e('s_cbranch_scc1 L_end')
    e(f's_lshr_b32 s43, s2, 5'); e(f's_lshl_b32 s43, s43, 5')
    assert nst[0] <= 7
    for k in range(1, nst[0]):
        e(f's_sub_u32 s44, s{sST+2*k}, s{sST}')
        e(f'v_mov_b32 v16, s44'); e('v_mov_b32 v17, 0')
        e(f'buffer_store_dword v16, v17, s[{sDBG}:{sDBG+3}], s43 offen offset:{4*(k-1)}')
    for k in range(2):
        e(f's_and_b32 s44, s{80+2*k}, 0xfffff')
        e(f'v_mov_b32 v16, s44'); e('v_mov_b32 v17, 0')
        e(f'buffer_store_dword v16, v17, s[{sDBG}:{sDBG+3}], s43 offen offset:{24+4*k}')
lab('L_end')
e('s_endpgm')
L.append(f".if (. - L_pc) < {opts['CST']*256}\n.fill ({opts['CST']*256} - (. - L_pc))/4, 4, 0xBF810000\n.endif")
L.append(f".if (L_end - L_pc) > {opts['CST']*256+64}\n.error \"code larger than prefetch range\"\n.endif")
name = opts['name']
acc_off = (VEND + 3) // 4 * 4
hdr = f'''; circular 3x3 conv (== rfft2/irfft2 conv) as implicit GEMM on bf16 MFMA; generated by gen/gen5.py
; @launch grid=(224,1,1) block=(256,1,1) lds={LDS}
.amdgcn_target "amdgcn-amd-amdhsa--gfx950"
.text
.globl {name}_kernel
.p2align 8
.type {name}_kernel,@function
{name}_kernel:
'''
ftr = f'''.section .rodata,"a"
.p2align 6
.amdhsa_kernel {name}_kernel
  .amdhsa_next_free_vgpr {acc_off + 252}
  .amdhsa_next_free_sgpr 102
  .amdhsa_accum_offset {acc_off}
  .amdhsa_group_segment_fixed_size 0
  .amdhsa_kernarg_size 40
  .amdhsa_user_sgpr_count 2
  .amdhsa_user_sgpr_kernarg_segment_ptr 1
  .amdhsa_system_sgpr_workgroup_id_x 1
.end_amdhsa_kernel
'''
open(sys.argv[1], 'w').write(hdr + '\n'.join(L) + '\n' + ftr)
```

```python
import sys
opts = dict(STAMP=0, NT=0, SC=1, PRE=24, RATE=3, CPF=1, WPF=1, SW=1, XFIRST=1, B2=42, EDEL=9, XL=99, XROW=4096, CST=40, WLATE=1, TR=1, DW=3, HY=1, XG=5, CPOS=0, FAKE2=0, EX=1, TM=18, TD=5, name='standalone__fft_conv__vision')
for a in sys.argv[2:]:
    k, v = a.split('=')
    opts[k] = int(v) if v.lstrip('-').isdigit() else v
STAMP = opts['STAMP']; SW = opts['SW']
L = []
def e(s): L.append('    ' + s)
def lab(s): L.append(s + ':')
XROW = opts['XROW']; XB = 0; WB = 16 * XROW; NSLOT = 8
LDS = WB + NSLOT * 12288
vXA = [1, 2, 3]; vWA = [4, 5, 6]; vWB_ = [7, 8, 9]; vGX = 10; vGW = [11, 12, 13]; vOUT = 14; vOUT2 = 15
ACC = 24; NACC = 5
XR = ACC + 12 * NACC; NXR = 2 * opts['DW'] + 2
CV = XR + 4 * NXR
WV = CV + 16
VEND = WV + 72
def wreg(s, t):
    if s < 21: return ('a', (s * 3 + t) * 4)
    return ('v', WV + ((s - 21) * 3 + t) * 4)
def rr(k, b, n): return f'{k}[{b}:{b+n-1}]'
sX = 8; sW = 12; sO = 16; sDBG = 20; sROW = 24
sXM = 40; sWM = 41; sOB = 42; sTMP = 43; sST = 48
nst = [0]
def stamp():
    if STAMP:
        e(f's_mem{"real" if STAMP==2 else ""}time s[{sST+2*nst[0]}:{sST+2*nst[0]+1}]'); nst[0] += 1
vm = []
def dmaW(r):
    so = f's{64 + r}' if r else '0'
    return [(('W', r), [f's_add_u32 m0, s{sWM}, {(r % NSLOT) * 12288}'] if i == 0 else [],
             f'buffer_load_dwordx4 v{vGW[i]}, s[{sW}:{sW+3}], {so} offen offset:{1024*i} lds') for i in range(3)]
def dmaX(rho):
    return [(('X', rho), [f's_add_u32 m0, s{sXM}, {XB + rho * XROW}'],
             f'buffer_load_dwordx4 v{vGX}, s[{sX}:{sX+3}], s{sROW+rho} offen lds')]
inited = set([('W', 0), ('X', 2)])
def sinit(t):
    if t in inited: return
    inited.add(t)
    if t[0] == 'W': e(f's_mov_b32 s{64 + t[1]}, {t[1] * 12288}')
    else: assert t[1] > 2; e(f's_add_u32 s{sROW+t[1]}, s{sROW+2}, {43008*(t[1]-2)}')
def emit(d):
    for p in d[1]: e(p)
    sinit(d[0])
    if L[-1].strip().startswith('s_add_u32 m0'): e('s_nop 0')
    vm.append(d[0]); e(d[2])
def vmcount(tags):
    idx = max(k for k, t in enumerate(vm) if t in tags)
    n = len(vm) - 1 - idx
    assert n < 64
    return n
def xp(r): return [x for o in (7, 0) for x in dmaX(r + o)] if r >= 2 else dmaX(r)
def xt(r): return [('X', r + 7), ('X', r)]
e(f's_load_dwordx2 s[{sX}:{sX+1}], s[0:1], 0')
e(f's_load_dwordx2 s[{sW}:{sW+1}], s[0:1], 8')
if STAMP: e('s_load_dwordx2 s[90:91], s[0:1], 24')
stamp()
if STAMP: e('s_memrealtime s[80:81]')
e('s_cmpk_ge_u32 s2, 224')
e('s_cbranch_scc1 L_end')
e('s_getpc_b64 s[88:89]')
lab('L_pc')
e(f"v_mul_u32_u24 v22, {opts['CST']}, v0")
e('global_load_dword v23, v22, s[88:89]'); vm.append(('C', 0))
e('v_readfirstlane_b32 s3, v0')
e('s_lshr_b32 s45, s2, 3')
e('s_and_b32 s43, s2, 7')
e('s_cmp_ge_u32 s45, 14')
e('s_cselect_b32 s44, 14, 0')
e('s_sub_u32 s47, s45, s44')
e('s_mul_i32 s46, s43, 28')
e('s_add_u32 s46, s46, s44')
e('s_mulk_i32 s47, 3072')
e('s_addk_i32 s47, -384')
if XROW == 4096:
    e(f's_lshl_b32 s{sXM}, s3, 4')
    u = 'v0'
else:
    e('s_min_u32 s44, s3, 152')
    e(f's_lshl_b32 s{sXM}, s44, 4')
    e('s_sub_u32 s44, s44, s3')
    e('v_add_u32 v18, s44, v0')
    u = 'v18'
e(f'v_lshrrev_b32 v17, 4, {u}')
e('v_mul_u32_u24 v17, 43, v17')
e('v_lshrrev_b32 v17, 6, v17')
e('v_and_b32 v17, 2, v17')
e(f'v_xor_b32 v16, {u}, v17')
e('v_lshl_add_u32 v16, v16, 4, s47')
e('v_add_u32 v17, 43008, v16')
e(f'v_min_u32 v{vGX}, v16, v17')
e(f's_mul_i32 s{sROW+2}, s46, 43008')
e(f's_mov_b32 s{sX+2}, 9633792'); e(f's_mov_b32 s{sX+3}, 0x20000')
def wsetup():
    e(f's_load_dwordx2 s[{sO}:{sO+1}], s[0:1], 16')
    e('v_and_b32 v0, 63, v0')
    e(f'v_lshlrev_b32 v16, 4, v0')
    e(f'v_and_b32 v17, 32, v0')
    e('s_mul_i32 s44, s3, 48')
    e(f's_add_u32 s{sWM}, s44, {WB}')
    e(f'v_add_u32 v{vGW[0]}, s44, v16')
    e(f'v_xor_b32 v{vGW[2]}, 32, v{vGW[0]}')
    e(f'v_xor_b32 v{vGW[1]}, v17, v{vGW[0]}')
    e(f's_mov_b32 s{sW+2}, 165888'); e(f's_mov_b32 s{sW+3}, s{sX+3}')
def wpfsetup():
    e('s_mulk_i32 s45, 47*128')
    e('s_mul_i32 s44, s3, 24')
    e('s_add_u32 s45, s45, s44')
    e('v_min_u32 v21, 11, v0')
    e('v_lshl_add_u32 v21, v21, 7, s45')
e('s_waitcnt lgkmcnt(0)')
if STAMP >= 3: stamp()
if opts['HY']:
    q = xp(8) + xp(7) + dmaW(0) + dmaW(1) + dmaW(2) + dmaW(3) + xp(6) + dmaW(4) + dmaW(5) + dmaW(6) + dmaW(7) + xp(5)
    for r in range(8, 14): q += dmaW(r)
    for r in range(4, -1, -1): q += xp(r)
else:
    q = xp(8) + dmaW(0) + dmaW(1) + dmaW(2) + dmaW(3) + xp(7) + dmaW(4) + dmaW(5) + dmaW(6) + dmaW(7) + xp(6)
    for r in range(8, 14): q += dmaW(r)
    for r in range(5, -1, -1): q += xp(r)
N0 = 7 if opts['HY'] else 5
for d in q[:N0 - 3]: emit(d)
wsetup()
for d in q[N0 - 3:N0]: emit(d)

if opts['WPF']:
    wpfsetup()
    e(f'buffer_load_dword v23, v21, s[{sW}:{sW+3}], 0 offen'); vm.append(('P', 0))
for d in q[N0:opts['PRE']]: emit(d)
q = q[opts['PRE']:]
for r in range(1, 14): sinit(('W', r))
for r in range(3, 16): sinit(('X', r))
inited.add(('X', 0)); inited.add(('X', 1))
e(f's_add_u32 s45, s46, 222')
e(f's_cmp_ge_u32 s45, 224')
e(f's_cselect_b32 s44, 224, 0')
e(f's_sub_u32 s45, s45, s44')
e(f's_mul_i32 s{sROW}, s45, 43008')
e(f's_add_u32 s{sROW+1}, s{sROW}, 43008')
if STAMP:
    e(f's_mov_b32 s{sDBG}, s90'); e(f's_and_b32 s{sDBG+1}, s91, 0xffff'); e(f's_mov_b32 s{sDBG+2}, 256'); e(f's_mov_b32 s{sDBG+3}, 0x20000')
e(f's_mov_b32 s{sO+2}, s{sX+2}'); e(f's_mov_b32 s{sO+3}, s{sX+3}')
e('s_lshr_b32 s3, s3, 6')
e('s_addk_i32 s47, 384')
e('v_and_b32 v16, 15, v0')
e('v_lshrrev_b32 v17, 4, v0')
e('s_lshr_b32 s86, s3, 1')
e('s_and_b32 s45, s3, 1')
e(f's_xor_b32 s43, s86, 1')
e(f's_mul_i32 s87, s43, 7')
e(f's_mul_i32 s43, s87, {XROW}')
for kw in range(3):
    e(f'v_add_u32 v18, {2-kw}, v16')
    e('v_lshrrev_b32 v19, 1, v18')
    e('v_and_b32 v19, 2, v19')
    e('v_xor_b32 v19, v19, v17')
    e('v_mul_u32_u24 v18, 192, v18')
    e('v_lshl_add_u32 v18, v19, 4, v18')
    e(f'v_add_u32 v{vXA[kw]}, s43, v18')
e('v_lshrrev_b32 v18, 2, v16')
e('v_lshl_add_u32 v18, v17, 3, v18')
e('v_mul_u32_u24 v18, 192, v18')
e(f'v_add_u32 v18, {WB}, v18')
e('v_and_b32 v19, 3, v0')
e('v_and_b32 v20, 1, v17')
e('v_lshlrev_b32 v20, 5, v20')
if SW:
    e('s_lshl_b32 s43, s45, 7')
    e('s_lshl_b32 s44, s45, 5')
    e('s_add_u32 s44, s44, 64')
    e('v_lshlrev_b32 v19, 3, v19')
    for t in range(3):
        if t < 2: e(f'v_add3_u32 v21, v19, {32*t}, s43')
        else: e('v_add_u32 v21, s44, v19')
        e('v_xor_b32 v21, v21, v20')
        e(f'v_add_u32 v{vWA[t]}, v21, v18')
        e(f'v_add_u32 v{vWB_[t]}, 61440, v{vWA[t]}')
    e('v_mul_u32_u24 v18, 192, v16')
    e('v_lshrrev_b32 v19, 1, v17')
    e('v_lshl_add_u32 v19, v19, 4, v20')
    e(f'v_add3_u32 v{vOUT}, v18, v19, s43')
    e('v_lshl_add_u32 v18, v17, 3, v18')
    e(f'v_add_u32 v{vOUT2}, s44, v18')
    if opts['FAKE2']:
        e('v_and_b32 v18, 14, v16'); e('v_add_u32 v18, s45, v18'); e('v_mul_u32_u24 v18, 192, v18')
        e('v_and_b32 v19, 1, v16'); e('v_lshlrev_b32 v19, 5, v19'); e('v_lshl_add_u32 v19, v17, 3, v19')
        e(f'v_add3_u32 v{vOUT2}, v18, v19, 64')
    if opts['FAKE2'] == 2:
        e('s_lshl_b32 s43, s45, 10'); e(f'v_lshl_add_u32 v{vOUT}, v0, 4, s43')
        e('s_lshl_b32 s43, s45, 9'); e('s_add_u32 s43, s43, 2048'); e(f'v_lshl_add_u32 v{vOUT2}, v0, 3, s43')
else:
    e('v_mul_u32_u24 v19, 24, v19')
    e('s_mul_i32 s43, s45, 96')
    e('v_add_u32 v19, s43, v19')
    for t in range(3):
        e(f'v_add_u32 v21, {8*t}, v19')
        e('v_xor_b32 v21, v21, v20')
        e(f'v_add_u32 v{vWA[t]}, v21, v18')
        e(f'v_add_u32 v{vWB_[t]}, 61440, v{vWA[t]}')
    e('v_mul_u32_u24 v18, 192, v16')
    e('v_mul_u32_u24 v19, 24, v17')
    e(f'v_add3_u32 v{vOUT}, v18, v19, s43')
    e(f'v_add_u32 v{vOUT2}, 16, v{vOUT}')
EX = opts['EX']; vOUT3 = 18; vER = 19; vEW = 20; EB = WB + 6 * 12288
if EX:
    e('v_and_b32 v21, 14, v16'); e('v_add_u32 v21, s45, v21')
    e('v_and_b32 v22, 1, v16')
    e('v_mul_u32_u24 v18, 192, v21'); e('v_lshl_add_u32 v18, v22, 5, v18'); e('v_lshl_add_u32 v18, v17, 3, v18')
    e(f'v_add_u32 v{vOUT3}, 64, v18')
    e('s_mul_i32 s43, s86, 1040'); e(f's_add_u32 s43, s43, {EB}')
    e('v_lshl_add_u32 v21, v17, 4, v21'); e('v_mul_u32_u24 v22, 520, v22')
    e('v_lshl_add_u32 v21, v21, 3, v22'); e(f'v_add_u32 v{vER}, s43, v21')
    e('s_mul_i32 s44, s45, 520'); e('s_add_u32 s43, s43, s44')
    e(f'v_lshl_add_u32 v{vEW}, v0, 3, s43')
e('s_add_u32 s43, s46, s87')
e('s_mul_i32 s43, s43, 43008')
e(f's_add_u32 s{sOB}, s43, s47')
F = []
HY = opts['HY']
def alluses(row): return [(8 - row - kh, kh) for kh in range(3) if 0 <= 8 - row - kh <= 6]
fidx = 0
for st in range(9 if not HY else 8):
    for kw in range(3):
        for j in range(3):
            if HY and st < 3:
                fr = [(7 - st, [u for u in alluses(7 - st) if u[1] <= st]), (8 - st, [(0, st)])]
            else:
                row = 8 - st - (1 if HY else 0); fr = [(row, alluses(row))]
            F.append([(row, kw, j, uses, fidx + n) for n, (row, uses) in enumerate(fr)]); fidx += len(fr)
if opts['TR']:
    G = []; tail = []; tail2 = []; TM = opts['TM'] if EX else 0
    for fr in F:
        (row, kw, j, uses, fi) = fr[0]
        if len(fr) == 1 and row <= 2:
            u = [x for x in uses if x[0] != 6]
            u6 = [x for x in uses if x[0] == 6]
            if len(tail2) < TM:
                u = u + [u6[0] + ((2,),)]; tail2.append([(row, kw, j, [u6[0] + ((0, 1),)], 0)])
            else: tail.append([(row, kw, j, u6, 0)])
            if u: G.append([(row, kw, j, u, 0)])
        else: G.append(fr)
    F = []; fidx = 0
    for fr in G + tail + tail2:
        F.append([f[:4] + (fidx + n,) for n, f in enumerate(fr)]); fidx += len(fr)
NF = len(F)
def rowsof(k): return [t for f in F[k] for t in xt(f[0])]
ds = []
def reads(k):
    out = []
    for (row, kw, j, _, fi) in F[k]:
        reg = XR + 4 * (fi % NXR)
        out.append((k, f'ds_read_b128 v[{reg}:{reg+3}], v{vXA[kw]} offset:{XB + row * XROW + j * 64}'))
    if k <= 26:
        slot = k % (2 * NSLOT)
        for t in range(3):
            kk, b = wreg(k, t)
            for h in range(2):
                off = slot * 6144 + h * 768; a = vWA[t]
                if slot >= 10: off -= 61440; a = vWB_[t]
                out.append((k, f'ds_read_b64_tr_b16 {rr(kk, b+2*h, 2)}, v{a} offset:{off}'))
    return out
def eds(r): ds.append(r[0]); e(r[1])
nt = (' nt' if opts['NT'] else '') + (' sc1' if opts['SC'] & 1 else '') + (' sc0' if opts['SC'] & 2 else '')
def epi(tile):
    acc = ACC + 12 * (tile % NACC); c = CV + 8 * (tile % 2)
    out = []
    for t in range(3):
        out.append(f'v_cvt_pk_bf16_f32 v{c+2*t}, v{acc+4*t}, v{acc+4*t+1}')
        out.append(f'v_cvt_pk_bf16_f32 v{c+2*t+1}, v{acc+4*t+2}, v{acc+4*t+3}')
    out.append(f's_add_u32 s{sTMP}, s{sOB}, {(6-tile)*43008}')
    st4 = f'buffer_store_dwordx4 v[{c}:{c+3}], v{vOUT}, s[{sO}:{sO+3}], s{sTMP} offen{nt}'
    st2 = f'buffer_store_dwordx2 v[{c+4}:{c+5}], v{vOUT2}, s[{sO}:{sO+3}], s{sTMP} offen{nt}'
    if EX and tile < 6:
        out += [f'ds_write_b64 v{vEW}, v[{c+4}:{c+5}] offset:{tile*2080}', f'v_permlane16_swap_b32 v{c}, v{c+2}', f'v_permlane16_swap_b32 v{c+1}, v{c+3}', st4]
    elif SW: out += [f'v_permlane16_swap_b32 v{c}, v{c+2}', f'v_permlane16_swap_b32 v{c+1}, v{c+3}', st2, st4]
    else: out += [st4, st2]
    return out
covered = set()
def barrier(need, lg=None):
    global q
    need = [t for t in need if t not in covered]
    while not all(vm.count(t) == (3 if t[0] == 'W' else 1) for t in need):
        print('forced', q[0][0], file=sys.stderr); emit(q.pop(0)); pre_done[0] = False
    n = vmcount(need)
    for t in vm[:len(vm) - n]: covered.add(t)
    e(f's_waitcnt vmcnt({n})' + (f' lgkmcnt({lg})' if lg is not None else ''))
    e('s_barrier')
pre_done = [False]
e('s_waitcnt lgkmcnt(0)')
DW = opts['DW']
barrier([('W', r) for r in range((DW + 1) // 2)] + rowsof(0))
stamp()
for kk in range(DW):
    for r in reads(kk): eds(r)
nextrd = DW
pend = []; delay = 0; cnt = {}; done = set(); gap_since = [0]
B2 = opts['B2']
exb = set(); exs = set(); exreg = {}
def exdst(i):
    p = EX - 1 - i % EX
    if i == 6: return CV + 4
    if EX == 1: return CV + 8 * (i % 2) + 6
    return CV + 8 * (i % 2) + 4 if p == 0 else (CV + 14 if p == 1 else CV + 6)
for k, frs in enumerate(F):
    if k == 27 or (STAMP == 1 and k in (9, 18)): stamp()
    idx = max(i for i, t in enumerate(ds) if t == k)
    lg = min(15, len(ds) - 1 - idx)
    if (k + DW) % 2 == 0 and k + DW <= 26:
        need = [('W', (k + DW) // 2)] + rowsof(k + DW + 1)
        barrier(need, lg)
    elif k + DW > 26 and k + 3 < NF and any(t not in covered for t in rowsof(k + 3)):
        r0 = F[k + 3][0][0]
        barrier([t for r in range(max(0, r0 - opts['XG'] + 1), r0 + 1) for t in xt(r)], lg)
    else: e(f's_waitcnt lgkmcnt({lg})')
    if EX:
        for i in range(7):
            if ('ER', i) in ds[:idx + 1] and i not in exs:
                exs.add(i); r = exdst(i)
                pend += [f's_add_u32 s44, s{sOB}, {(6-i)*43008}', f'buffer_store_dwordx2 v[{r}:{r+1}], v{vOUT3}, s[{sO}:{sO+3}], s44 offen{nt}']
        for i in list(range(EX - 1, 6, EX)) + [6]:
            if ('EW', i) in ds[:idx + 1] and i not in exb:
                exb.add(i)
                if L[-1].strip() != 's_barrier': e('s_barrier')
                for i2 in (range(i - EX + 1, i + 1) if i < 6 else [6]):
                    r = exdst(i2); assert r not in exreg; exreg[r] = i2
                    pend.append(f'ds_read_b64 v[{r}:{r+1}], v{vER} offset:{i2*2080}')
    D = DW if k < 26 else 3
    rd = []
    while nextrd <= min(k + D, NF - 1):
        for t in rowsof(nextrd): assert t in covered, (k, t)
        rd += reads(nextrd); nextrd += 1
    ms = []
    for (row, kw, j, uses, fi) in frs:
        for u_ in uses:
            i, kh = u_[:2]
            for t in (u_[2] if len(u_) > 2 else range(3)):
                acc = ACC + 12 * (i % NACC) + 4 * t
                kk, b = wreg(kh * 9 + kw * 3 + j, t)
                c = f'v[{acc}:{acc+3}]' if cnt.get((i, t), 0) else '0'
                if not cnt.get((i, t), 0): assert not any(f'v{acc},' in p for p in pend)
                x = XR + 4 * (fi % NXR)
                ms.append(f'v_mfma_f32_16x16x32_bf16 v[{acc}:{acc+3}], {rr(kk,b,4)}, v[{x}:{x+3}], {c}')
                cnt[(i, t)] = cnt.get((i, t), 0) + 1
    ndma = opts['RATE']
    per = -(-len(rd) // len(ms))
    for mi, m in enumerate(ms):
        e(m); gap_since[0] += 1
        used = 0
        while rd and used < per: eds(rd.pop(0)); used += 1
        last = mi == len(ms) - 1
        while used < (1 if last else 2) or (last and len(ms) == 3 and q and ndma):
            ok = q and ndma and not (q[0][0][0] == 'X' and q[0][0] not in [t for kk in range(k, min(NF, k + opts['XL'])) for t in rowsof(kk)]) and not (q[0][0][0] == 'W' and q[0][0][1] >= NSLOT and k < 2 * (q[0][0][1] - NSLOT) + 2 + DW % 2 - (DW // 2 - 1) * 0)
            if ok and (len(ms) <= 6 or mi % 2 == 0 or pre_done[0]):
                if q[0][1] and not pre_done[0]:
                    e(q[0][1][0]); pre_done[0] = True; used += 1
                    if not (last and len(ms) == 3): break
                else:
                    d = q.pop(0); emit((d[0], [], d[2])); pre_done[0] = False; ndma -= 1; used += 1
                    if len(ms) > 3: break
            elif pend:
                it = pend.pop(0)
                if it[0] == '@':
                    if gap_since[0] < int(it[1:]): pend.insert(0, it); break
                    it = pend.pop(0)
                e(it); used += 1
                if 'store' in it: vm.append(('S', 0))
                if it.startswith('ds_write'): ds.append(('EW', int(it.split(':')[-1]) // 2080))
                if it.startswith('ds_read'): ds.append(('ER', int(it.split(':')[-1]) // 2080))
                if f'v{vOUT3},' in it: del exreg[int(it.split('[')[1].split(':')[0])]
                if it.startswith('v_cvt'): assert int(it.split()[1][1:-1]) & ~1 not in exreg, it
                break
            else: break
    for i in range(6):
        if cnt.get((i, 0), 0) == 27 and i not in done:
            if not any(p.startswith('v_cvt') or True for p in pend): delay = opts['EDEL']
            else: delay = max(delay, 1)
            pend += ['@9'] + epi(i); done.add(i); gap_since[0] = 0
    if EX and TM and cnt.get((6, 2), 0) == 27 and 6 not in done:
        ep = epi(6); done.add(6); gap_since[0] = 0
        pend += [f"@{opts['TD']}", ep[4], ep[5], f'ds_write_b64 v{vEW}, v[{CV+4}:{CV+5}] offset:{6*2080}']
assert not q and (TM and EX or not pend)
for it in pend:
    assert 'v_cvt' not in it and it[0] != '@' and not it.startswith('ds_write'), it
    e(it)
    if it.startswith('ds_read'): ds.append(('ER', int(it.split(':')[-1]) // 2080))
    if f'v{vOUT3},' in it: del exreg[int(it.split('[')[1].split(':')[0])]
pend = []
if EX and TM:
    if 6 not in exb:
        e('s_waitcnt lgkmcnt(0)'); e('s_barrier'); e(f'ds_read_b64 v[{CV+4}:{CV+5}], v{vER} offset:{6*2080}')
    rest = [i for i in range(7) if i not in exs]
    print('leftover', rest, 6 in exb, file=sys.stderr)
    stamp(); e('s_nop 7')
    ep = epi(6)
    for it in ep[0:2] + ['s_nop 0'] + ep[2:4] + [ep[6], 's_nop 0'] + ep[7:9] + [ep[10]]: e(it)
    if rest: e('s_waitcnt lgkmcnt(0)')
    for i in rest:
        r = exdst(i); e(f's_add_u32 s44, s{sOB}, {(6-i)*43008}'); e(f'buffer_store_dwordx2 v[{r}:{r+1}], v{vOUT3}, s[{sO}:{sO+3}], s44 offen{nt}')
    exs = set(range(6)); exreg = {}
assert not pend and not q and (not EX or (len(exs) >= 6 and not exreg))
if not (EX and TM): stamp(); e('s_nop 7')
for it in (epi(6) if not (EX and TM) else []):
    if 'permlane16_swap_b32 v%d,' % CV in it: e('s_nop 0')
    e(it)
if STAMP:
    e('s_waitcnt vmcnt(0)')
    stamp()
    e('s_memrealtime s[82:83]')
    e('s_waitcnt lgkmcnt(0)')
    e(f's_cmp_lg_u32 s3, 0'); e('s_cbranch_scc1 L_end')
    e(f's_and_b32 s43, s2, 31'); e(f's_cmp_lg_u32 s43, 5'); e('s_cbranch_scc1 L_end')
    e(f's_lshr_b32 s43, s2, 5'); e(f's_lshl_b32 s43, s43, 5')
    assert nst[0] <= 7
    for k in range(1, nst[0]):
        e(f's_sub_u32 s44, s{sST+2*k}, s{sST}')
        e(f'v_mov_b32 v16, s44'); e('v_mov_b32 v17, 0')
        e(f'buffer_store_dword v16, v17, s[{sDBG}:{sDBG+3}], s43 offen offset:{4*(k-1)}')
    for k in range(2):
        e(f's_and_b32 s44, s{80+2*k}, 0xfffff')
        e(f'v_mov_b32 v16, s44'); e('v_mov_b32 v17, 0')
        e(f'buffer_store_dword v16, v17, s[{sDBG}:{sDBG+3}], s43 offen offset:{24+4*k}')
lab('L_end')
e('s_endpgm')
L.append(f".if (. - L_pc) < {opts['CST']*256}\n.fill ({opts['CST']*256} - (. - L_pc))/4, 4, 0xBF810000\n.endif")
L.append(f".if (L_end - L_pc) > {opts['CST']*256+64}\n.error \"code larger than prefetch range\"\n.endif")
name = opts['name']
acc_off = (VEND + 3) // 4 * 4
hdr = f'''; circular 3x3 conv (== rfft2/irfft2 conv) as implicit GEMM on bf16 MFMA; generated by gen/gen5.py
; @launch grid=(224,1,1) block=(256,1,1) lds={LDS}
.amdgcn_target "amdgcn-amd-amdhsa--gfx950"
.text
.globl {name}_kernel
.p2align 8
.type {name}_kernel,@function
{name}_kernel:
'''
ftr = f'''.section .rodata,"a"
.p2align 6
.amdhsa_kernel {name}_kernel
  .amdhsa_next_free_vgpr {acc_off + 252}
  .amdhsa_next_free_sgpr 102
  .amdhsa_accum_offset {acc_off}
  .amdhsa_group_segment_fixed_size 0
  .amdhsa_kernarg_size 40
  .amdhsa_user_sgpr_count 2
  .amdhsa_user_sgpr_kernarg_segment_ptr 1
  .amdhsa_system_sgpr_workgroup_id_x 1
.end_amdhsa_kernel
'''
open(sys.argv[1], 'w').write(hdr + '\n'.join(L) + '\n' + ftr)
```

```python
import sys
opts = dict(STAMP=0, NT=0, SC=1, PRE=24, RATE=3, CPF=1, WPF=1, SW=1, XFIRST=1, B2=42, EDEL=9, XL=99, XROW=4096, CST=41, WLATE=1, TR=1, DW=3, HY=1, XG=5, CPOS=0, FAKE2=0, EX=1, TM=18, TD=5, LS=0, XPF=0, XPP=99, name='standalone__fft_conv__vision')
for a in sys.argv[2:]:
    k, v = a.split('=')
    opts[k] = int(v) if v.lstrip('-').isdigit() else v
STAMP = opts['STAMP']; SW = opts['SW']
L = []
def e(s): L.append('    ' + s)
def lab(s): L.append(s + ':')
XROW = opts['XROW']; XB = 0; WB = 16 * XROW; NSLOT = 8
LDS = WB + NSLOT * 12288
vXA = [1, 2, 3]; vWA = [4, 5, 6]; vWB_ = [7, 8, 9]; vGX = 10; vGW = [11, 12, 13]; vOUT = 14; vOUT2 = 15
ACC = 24; NACC = 5
XR = ACC + 12 * NACC; NXR = 2 * opts['DW'] + 2
CV = XR + 4 * NXR
WV = CV + 16
VEND = WV + 72
def wreg(s, t):
    if s < 21: return ('a', (s * 3 + t) * 4)
    return ('v', WV + ((s - 21) * 3 + t) * 4)
def rr(k, b, n): return f'{k}[{b}:{b+n-1}]'
sX = 8; sW = 12; sO = 16; sDBG = 20; sROW = 24
sXM = 40; sWM = 41; sOB = 42; sTMP = 43; sST = 48
nst = [0]
def stamp():
    if STAMP:
        e(f's_mem{"real" if STAMP==2 else ""}time s[{sST+2*nst[0]}:{sST+2*nst[0]+1}]'); nst[0] += 1
vm = []
def dmaW(r):
    so = f's{64 + r}' if r else '0'
    return [(('W', r), [f's_add_u32 m0, s{sWM}, {(r % NSLOT) * 12288}'] if i == 0 else [],
             f'buffer_load_dwordx4 v{vGW[i]}, s[{sW}:{sW+3}], {so} offen offset:{1024*i} lds') for i in range(3)]
def dmaX(rho):
    return [(('X', rho), [f's_add_u32 m0, s{sXM}, {XB + rho * XROW}'],
             f'buffer_load_dwordx4 v{vGX}, s[{sX}:{sX+3}], s{sROW+rho} offen lds')]
inited = set([('W', 0), ('X', 2)])
def sinit(t):
    if t in inited: return
    inited.add(t)
    if t[0] == 'W': e(f's_mov_b32 s{64 + t[1]}, {t[1] * 12288}')
    else: assert t[1] > 2; e(f's_add_u32 s{sROW+t[1]}, s{sROW+2}, {43008*(t[1]-2)}')
def emit(d):
    for p in d[1]: e(p)
    sinit(d[0])
    if L[-1].strip().startswith('s_add_u32 m0'): e('s_nop 0')
    vm.append(d[0]); e(d[2])
def vmcount(tags):
    idx = max(k for k, t in enumerate(vm) if t in tags)
    n = len(vm) - 1 - idx
    assert n < 64
    return n
def xp(r): return [x for o in (7, 0) for x in dmaX(r + o)] if r >= 2 else dmaX(r)
def xt(r): return [('X', r + 7), ('X', r)]
e(f's_load_dwordx2 s[{sX}:{sX+1}], s[0:1], 0')
e(f's_load_dwordx2 s[{sW}:{sW+1}], s[0:1], 8')
if STAMP: e('s_load_dwordx2 s[90:91], s[0:1], 24')
stamp()
if STAMP: e('s_memrealtime s[80:81]')
e('s_cmpk_ge_u32 s2, 224')
e('s_cbranch_scc1 L_end')
e('s_getpc_b64 s[88:89]')
lab('L_pc')
e(f"v_mul_u32_u24 v22, {opts['CST']}, v0")
e('global_load_dword v23, v22, s[88:89]'); vm.append(('C', 0))
e('v_readfirstlane_b32 s3, v0')
e('s_lshr_b32 s45, s2, 3')
e('s_and_b32 s43, s2, 7')
e('s_cmp_ge_u32 s45, 14')
e('s_cselect_b32 s44, 14, 0')
e('s_sub_u32 s47, s45, s44')
e('s_mul_i32 s46, s43, 28')
e('s_add_u32 s46, s46, s44')
e('s_mulk_i32 s47, 3072')
e('s_addk_i32 s47, -384')
if XROW == 4096:
    e(f's_lshl_b32 s{sXM}, s3, 4')
    u = 'v0'
else:
    e('s_min_u32 s44, s3, 152')
    e(f's_lshl_b32 s{sXM}, s44, 4')
    e('s_sub_u32 s44, s44, s3')
    e('v_add_u32 v18, s44, v0')
    u = 'v18'
e(f'v_lshrrev_b32 v17, 4, {u}')
e('v_mul_u32_u24 v17, 43, v17')
e('v_lshrrev_b32 v17, 6, v17')
e('v_and_b32 v17, 2, v17')
e(f'v_xor_b32 v16, {u}, v17')
e('v_lshl_add_u32 v16, v16, 4, s47')
e('v_add_u32 v17, 43008, v16')
e(f'v_min_u32 v{vGX}, v16, v17')
e(f's_mul_i32 s{sROW+2}, s46, 43008')
e(f's_mov_b32 s{sX+2}, 9633792'); e(f's_mov_b32 s{sX+3}, 0x20000')
def wsetup():
    e(f's_load_dwordx2 s[{sO}:{sO+1}], s[0:1], 16')
    e('v_and_b32 v0, 63, v0')
    e(f'v_lshlrev_b32 v16, 4, v0')
    e(f'v_and_b32 v17, 32, v0')
    e('s_mul_i32 s44, s3, 48')
    e(f's_add_u32 s{sWM}, s44, {WB}')
    e(f'v_add_u32 v{vGW[0]}, s44, v16')
    e(f'v_xor_b32 v{vGW[2]}, 32, v{vGW[0]}')
    e(f'v_xor_b32 v{vGW[1]}, v17, v{vGW[0]}')
    e(f's_mov_b32 s{sW+2}, 165888'); e(f's_mov_b32 s{sW+3}, s{sX+3}')
def wpfsetup():
    e('s_mulk_i32 s45, 47*128')
    e('s_mul_i32 s44, s3, 24')
    e('s_add_u32 s45, s45, s44')
    e('v_min_u32 v21, 11, v0')
    e('v_lshl_add_u32 v21, v21, 7, s45')
e('s_waitcnt lgkmcnt(0)')
if STAMP >= 3: stamp()
if opts['HY']:
    q = xp(8) + xp(7) + dmaW(0) + dmaW(1) + dmaW(2) + dmaW(3) + xp(6) + dmaW(4) + dmaW(5) + dmaW(6) + dmaW(7) + xp(5)
    for r in range(8, 14): q += dmaW(r)
    for r in range(4, -1, -1): q += xp(r)
else:
    q = xp(8) + dmaW(0) + dmaW(1) + dmaW(2) + dmaW(3) + xp(7) + dmaW(4) + dmaW(5) + dmaW(6) + dmaW(7) + xp(6)
    for r in range(8, 14): q += dmaW(r)
    for r in range(5, -1, -1): q += xp(r)
N0 = 7 if opts['HY'] else 5
for d in q[:N0 - 3]: emit(d)
wsetup()
for d in q[N0 - 3:N0]: emit(d)

if opts['WPF']:
    wpfsetup()
    e(f'buffer_load_dword v23, v21, s[{sW}:{sW+3}], 0 offen'); vm.append(('P', 0))
def xpf():
    e('v_and_b32 v21, 31, v0'); e('v_min_u32 v21, 26, v21'); e('v_lshl_add_u32 v21, v21, 7, s47')
    e('v_add_u32 v22, 43008, v21'); e('v_min_u32 v21, v21, v22')
    e('v_lshrrev_b32 v22, 5, v0'); e('v_mul_u32_u24 v22, 43008, v22'); e('v_add_u32 v22, v21, v22')
    e('s_bfe_u32 s44, s3, 0x10006'); e('s_mul_i32 s44, s44, 86016')
    e('s_lshr_b32 s45, s3, 7'); e('s_mul_i32 s45, s45, 301056')
    e('s_add_u32 s44, s44, s45'); e(f's_add_u32 s44, s44, s{sROW+2}')
    e(f'buffer_load_dword v23, v22, s[{sX}:{sX+3}], s44 offen'); vm.append(('P', 0))
for n_, d in enumerate(q[N0:opts['PRE']]):
    if opts['XPF'] and n_ + N0 == opts['XPP']: xpf()
    emit(d)
if opts['XPF'] and opts['XPP'] >= opts['PRE']: xpf()
q = q[opts['PRE']:]
for r in range(1, 14): sinit(('W', r))
for r in range(3, 16): sinit(('X', r))
inited.add(('X', 0)); inited.add(('X', 1))
e(f's_add_u32 s45, s46, 222')
e(f's_cmp_ge_u32 s45, 224')
e(f's_cselect_b32 s44, 224, 0')
e(f's_sub_u32 s45, s45, s44')
e(f's_mul_i32 s{sROW}, s45, 43008')
e(f's_add_u32 s{sROW+1}, s{sROW}, 43008')
if opts['XPF'] == 2: e(f'buffer_load_dword v23, v22, s[{sX}:{sX+3}], s{sROW} offen'); vm.append(('P', 0))
if STAMP:
    e(f's_mov_b32 s{sDBG}, s90'); e(f's_and_b32 s{sDBG+1}, s91, 0xffff'); e(f's_mov_b32 s{sDBG+2}, 256'); e(f's_mov_b32 s{sDBG+3}, 0x20000')
e(f's_mov_b32 s{sO+2}, s{sX+2}'); e(f's_mov_b32 s{sO+3}, s{sX+3}')
e('s_lshr_b32 s3, s3, 6')
e('s_addk_i32 s47, 384')
e('v_and_b32 v16, 15, v0')
e('v_lshrrev_b32 v17, 4, v0')
e('s_lshr_b32 s86, s3, 1')
e('s_and_b32 s45, s3, 1')
e(f's_xor_b32 s43, s86, 1')
e(f's_mul_i32 s87, s43, 7')
e(f's_mul_i32 s43, s87, {XROW}')
for kw in range(3):
    e(f'v_add_u32 v18, {2-kw}, v16')
    e('v_lshrrev_b32 v19, 1, v18')
    e('v_and_b32 v19, 2, v19')
    e('v_xor_b32 v19, v19, v17')
    e('v_mul_u32_u24 v18, 192, v18')
    e('v_lshl_add_u32 v18, v19, 4, v18')
    e(f'v_add_u32 v{vXA[kw]}, s43, v18')
e('v_lshrrev_b32 v18, 2, v16')
e('v_lshl_add_u32 v18, v17, 3, v18')
e('v_mul_u32_u24 v18, 192, v18')
e(f'v_add_u32 v18, {WB}, v18')
e('v_and_b32 v19, 3, v0')
e('v_and_b32 v20, 1, v17')
e('v_lshlrev_b32 v20, 5, v20')
if SW:
    e('s_lshl_b32 s43, s45, 7')
    e('s_lshl_b32 s44, s45, 5')
    e('s_add_u32 s44, s44, 64')
    e('v_lshlrev_b32 v19, 3, v19')
    for t in range(3):
        if t < 2: e(f'v_add3_u32 v21, v19, {32*t}, s43')
        else: e('v_add_u32 v21, s44, v19')
        e('v_xor_b32 v21, v21, v20')
        e(f'v_add_u32 v{vWA[t]}, v21, v18')
        e(f'v_add_u32 v{vWB_[t]}, 61440, v{vWA[t]}')
    e('v_mul_u32_u24 v18, 192, v16')
    e('v_lshrrev_b32 v19, 1, v17')
    e('v_lshl_add_u32 v19, v19, 4, v20')
    e(f'v_add3_u32 v{vOUT}, v18, v19, s43')
    e('v_lshl_add_u32 v18, v17, 3, v18')
    e(f'v_add_u32 v{vOUT2}, s44, v18')
    if opts['FAKE2']:
        e('v_and_b32 v18, 14, v16'); e('v_add_u32 v18, s45, v18'); e('v_mul_u32_u24 v18, 192, v18')
        e('v_and_b32 v19, 1, v16'); e('v_lshlrev_b32 v19, 5, v19'); e('v_lshl_add_u32 v19, v17, 3, v19')
        e(f'v_add3_u32 v{vOUT2}, v18, v19, 64')
    if opts['FAKE2'] == 2:
        e('s_lshl_b32 s43, s45, 10'); e(f'v_lshl_add_u32 v{vOUT}, v0, 4, s43')
        e('s_lshl_b32 s43, s45, 9'); e('s_add_u32 s43, s43, 2048'); e(f'v_lshl_add_u32 v{vOUT2}, v0, 3, s43')
else:
    e('v_mul_u32_u24 v19, 24, v19')
    e('s_mul_i32 s43, s45, 96')
    e('v_add_u32 v19, s43, v19')
    for t in range(3):
        e(f'v_add_u32 v21, {8*t}, v19')
        e('v_xor_b32 v21, v21, v20')
        e(f'v_add_u32 v{vWA[t]}, v21, v18')
        e(f'v_add_u32 v{vWB_[t]}, 61440, v{vWA[t]}')
    e('v_mul_u32_u24 v18, 192, v16')
    e('v_mul_u32_u24 v19, 24, v17')
    e(f'v_add3_u32 v{vOUT}, v18, v19, s43')
    e(f'v_add_u32 v{vOUT2}, 16, v{vOUT}')
EX = opts['EX']; vOUT3 = 18; vER = 19; vEW = 20; EB = WB + 6 * 12288
if EX:
    e('v_and_b32 v21, 14, v16'); e('v_add_u32 v21, s45, v21')
    e('v_and_b32 v22, 1, v16')
    e('v_mul_u32_u24 v18, 192, v21'); e('v_lshl_add_u32 v18, v22, 5, v18'); e('v_lshl_add_u32 v18, v17, 3, v18')
    e(f'v_add_u32 v{vOUT3}, 64, v18')
    e('s_mul_i32 s43, s86, 1040'); e(f's_add_u32 s43, s43, {EB}')
    e('v_lshl_add_u32 v21, v17, 4, v21'); e('v_mul_u32_u24 v22, 520, v22')
    e('v_lshl_add_u32 v21, v21, 3, v22'); e(f'v_add_u32 v{vER}, s43, v21')
    e('s_mul_i32 s44, s45, 520'); e('s_add_u32 s43, s43, s44')
    e(f'v_lshl_add_u32 v{vEW}, v0, 3, s43')
e('s_add_u32 s43, s46, s87')
e('s_mul_i32 s43, s43, 43008')
e(f's_add_u32 s{sOB}, s43, s47')
F = []
HY = opts['HY']
def alluses(row): return [(8 - row - kh, kh) for kh in range(3) if 0 <= 8 - row - kh <= 6]
fidx = 0
for st in range(9 if not HY else 8):
    for kw in range(3):
        for j in range(3):
            if HY and st < 3:
                fr = [(7 - st, [u for u in alluses(7 - st) if u[1] <= st]), (8 - st, [(0, st)])]
            else:
                row = 8 - st - (1 if HY else 0); fr = [(row, alluses(row))]
            F.append([(row, kw, j, uses, fidx + n) for n, (row, uses) in enumerate(fr)]); fidx += len(fr)
if opts['TR']:
    G = []; tail = []; tail2 = []; TM = opts['TM'] if EX else 0
    for fr in F:
        (row, kw, j, uses, fi) = fr[0]
        if len(fr) == 1 and row <= 2:
            u = [x for x in uses if x[0] != 6]
            u6 = [x for x in uses if x[0] == 6]
            if len(tail2) < TM:
                u = u + [u6[0] + ((2,),)]; tail2.append([(row, kw, j, [u6[0] + ((0, 1),)], 0)])
            else: tail.append([(row, kw, j, u6, 0)])
            if u: G.append([(row, kw, j, u, 0)])
        else: G.append(fr)
    F = []; fidx = 0
    for fr in G + tail + tail2:
        F.append([f[:4] + (fidx + n,) for n, f in enumerate(fr)]); fidx += len(fr)
NF = len(F)
def rowsof(k): return [t for f in F[k] for t in xt(f[0])]
ds = []
def reads(k):
    out = []
    for (row, kw, j, _, fi) in F[k]:
        reg = XR + 4 * (fi % NXR)
        out.append((k, f'ds_read_b128 v[{reg}:{reg+3}], v{vXA[kw]} offset:{XB + row * XROW + j * 64}'))
    if k <= 26:
        slot = k % (2 * NSLOT)
        for t in range(3):
            kk, b = wreg(k, t)
            for h in range(2):
                off = slot * 6144 + h * 768; a = vWA[t]
                if slot >= 10: off -= 61440; a = vWB_[t]
                out.append((k, f'ds_read_b64_tr_b16 {rr(kk, b+2*h, 2)}, v{a} offset:{off}'))
    return out
def eds(r): ds.append(r[0]); e(r[1])
nt = (' nt' if opts['NT'] else '') + (' sc1' if opts['SC'] & 1 else '') + (' sc0' if opts['SC'] & 2 else '')
def epi(tile):
    acc = ACC + 12 * (tile % NACC); c = CV + 8 * (tile % 2)
    out = []
    for t in range(3):
        out.append(f'v_cvt_pk_bf16_f32 v{c+2*t}, v{acc+4*t}, v{acc+4*t+1}')
        out.append(f'v_cvt_pk_bf16_f32 v{c+2*t+1}, v{acc+4*t+2}, v{acc+4*t+3}')
    out.append(f's_add_u32 s{sTMP}, s{sOB}, {(6-tile)*43008}')
    st4 = f'buffer_store_dwordx4 v[{c}:{c+3}], v{vOUT}, s[{sO}:{sO+3}], s{sTMP} offen{nt}'
    st2 = f'buffer_store_dwordx2 v[{c+4}:{c+5}], v{vOUT2}, s[{sO}:{sO+3}], s{sTMP} offen{nt}'
    if EX and tile < 6:
        out += [f'ds_write_b64 v{vEW}, v[{c+4}:{c+5}] offset:{tile*2080}', f'v_permlane16_swap_b32 v{c}, v{c+2}', f'v_permlane16_swap_b32 v{c+1}, v{c+3}', st4]
    elif SW: out += [f'v_permlane16_swap_b32 v{c}, v{c+2}', f'v_permlane16_swap_b32 v{c+1}, v{c+3}', st2, st4]
    else: out += [st4, st2]
    return out
covered = set()
def barrier(need, lg=None):
    global q
    need = [t for t in need if t not in covered]
    while not all(vm.count(t) == (3 if t[0] == 'W' else 1) for t in need):
        print('forced', q[0][0], file=sys.stderr); emit(q.pop(0)); pre_done[0] = False
    n = vmcount(need)
    for t in vm[:len(vm) - n]: covered.add(t)
    e(f's_waitcnt vmcnt({n})' + (f' lgkmcnt({lg})' if lg is not None else ''))
    e('s_barrier')
pre_done = [False]
e('s_waitcnt lgkmcnt(0)')
DW = opts['DW']
barrier([('W', r) for r in range((DW + 1) // 2)] + rowsof(0))
stamp()
for kk in range(DW):
    for r in reads(kk): eds(r)
nextrd = DW
pend = []; delay = 0; cnt = {}; done = set(); gap_since = [0]
B2 = opts['B2']
exb = set(); exs = set(); exreg = {}
def exdst(i):
    p = EX - 1 - i % EX
    if i == 6: return CV + 4
    if EX == 1: return CV + 8 * (i % 2) + 6
    return CV + 8 * (i % 2) + 4 if p == 0 else (CV + 14 if p == 1 else CV + 6)
for k, frs in enumerate(F):
    if k == 27 or (STAMP == 1 and k in (9, 18)): stamp()
    idx = max(i for i, t in enumerate(ds) if t == k)
    lg = min(15, len(ds) - 1 - idx)
    if (k + DW) % 2 == 0 and k + DW <= 26:
        need = [('W', (k + DW) // 2)] + rowsof(k + DW + 1)
        barrier(need, lg)
    elif k + DW > 26 and k + 3 < NF and any(t not in covered for t in rowsof(k + 3)):
        r0 = F[k + 3][0][0]
        barrier([t for r in range(max(0, r0 - opts['XG'] + 1), r0 + 1) for t in xt(r)], lg)
    else: e(f's_waitcnt lgkmcnt({lg})')
    if EX:
        for i in range(7):
            if ('ER', i) in ds[:idx + 1] and i not in exs:
                exs.add(i); r = exdst(i)
                pend += [f's_add_u32 s44, s{sOB}, {(6-i)*43008}', f'buffer_store_dwordx2 v[{r}:{r+1}], v{vOUT3}, s[{sO}:{sO+3}], s44 offen{nt}']
        for i in list(range(EX - 1, 6, EX)) + [6]:
            if ('EW', i) in ds[:idx + 1] and i not in exb:
                exb.add(i)
                if L[-1].strip() != 's_barrier': e('s_barrier')
                for i2 in (range(i - EX + 1, i + 1) if i < 6 else [6]):
                    r = exdst(i2); assert r not in exreg; exreg[r] = i2
                    pend.append(f'ds_read_b64 v[{r}:{r+1}], v{vER} offset:{i2*2080}')
    D = DW if k < 26 else 3
    rd = []
    while nextrd <= min(k + D, NF - 1):
        for t in rowsof(nextrd): assert t in covered, (k, t)
        rd += reads(nextrd); nextrd += 1
    ms = []
    for (row, kw, j, uses, fi) in frs:
        for u_ in uses:
            i, kh = u_[:2]
            for t in (u_[2] if len(u_) > 2 else range(3)):
                acc = ACC + 12 * (i % NACC) + 4 * t
                kk, b = wreg(kh * 9 + kw * 3 + j, t)
                c = f'v[{acc}:{acc+3}]' if cnt.get((i, t), 0) else '0'
                if not cnt.get((i, t), 0): assert not any(f'v{acc},' in p for p in pend)
                x = XR + 4 * (fi % NXR)
                ms.append(f'v_mfma_f32_16x16x32_bf16 v[{acc}:{acc+3}], {rr(kk,b,4)}, v[{x}:{x+3}], {c}')
                cnt[(i, t)] = cnt.get((i, t), 0) + 1
    ndma = opts['RATE']
    per = -(-len(rd) // len(ms))
    for mi, m in enumerate(ms):
        e(m); gap_since[0] += 1
        used = 0
        while rd and used < per: eds(rd.pop(0)); used += 1
        last = mi == len(ms) - 1
        while used < (1 if last else 2) or (last and len(ms) == 3 and q and ndma):
            ok = q and ndma and not (q[0][0][0] == 'X' and q[0][0] not in [t for kk in range(k, min(NF, k + opts['XL'])) for t in rowsof(kk)]) and not (q[0][0][0] == 'W' and q[0][0][1] >= NSLOT and k < 2 * (q[0][0][1] - NSLOT) + 2 + DW % 2 - (DW // 2 - 1) * 0)
            if ok and (len(ms) <= 6 or mi % 2 == 0 or pre_done[0]):
                if q[0][1] and not pre_done[0]:
                    e(q[0][1][0]); pre_done[0] = True; used += 1
                    if not (last and len(ms) == 3): break
                else:
                    d = q.pop(0); emit((d[0], [], d[2])); pre_done[0] = False; ndma -= 1; used += 1
                    if len(ms) > 3: break
            elif pend:
                it = pend.pop(0)
                if it[0] == '@':
                    if gap_since[0] < int(it[1:]): pend.insert(0, it); break
                    it = pend.pop(0)
                e(it); used += 1
                if 'store' in it: vm.append(('S', 0))
                if it.startswith('ds_write'): ds.append(('EW', int(it.split(':')[-1]) // 2080))
                if it.startswith('ds_read'): ds.append(('ER', int(it.split(':')[-1]) // 2080))
                if f'v{vOUT3},' in it: del exreg[int(it.split('[')[1].split(':')[0])]
                if it.startswith('v_cvt'): assert int(it.split()[1][1:-1]) & ~1 not in exreg, it
                break
            else: break
    for i in range(6):
        if cnt.get((i, 0), 0) == 27 and i not in done:
            if not any(p.startswith('v_cvt') or True for p in pend): delay = opts['EDEL']
            else: delay = max(delay, 1)
            pend += ['@9'] + epi(i); done.add(i); gap_since[0] = 0
    if EX and TM and cnt.get((6, 2), 0) == 27 and 6 not in done:
        ep = epi(6); done.add(6); gap_since[0] = 0
        pend += [f"@{opts['TD']}", ep[4], ep[5], f'ds_write_b64 v{vEW}, v[{CV+4}:{CV+5}] offset:{6*2080}']
assert not q and (TM and EX or not pend)
for it in pend:
    assert 'v_cvt' not in it and it[0] != '@' and not it.startswith('ds_write'), it
    e(it)
    if it.startswith('ds_read'): ds.append(('ER', int(it.split(':')[-1]) // 2080))
    if f'v{vOUT3},' in it: del exreg[int(it.split('[')[1].split(':')[0])]
pend = []
if EX and TM:
    if 6 not in exb:
        e('s_waitcnt lgkmcnt(0)'); e('s_barrier'); e(f'ds_read_b64 v[{CV+4}:{CV+5}], v{vER} offset:{6*2080}')
    rest = [i for i in range(7) if i not in exs]
    print('leftover', rest, 6 in exb, file=sys.stderr)
    stamp(); e('s_nop 7')
    ep = epi(6)
    for it in ep[0:2] + ['s_nop 0'] + ep[2:4] + [ep[6], 's_nop 0'] + ep[7:9] + [ep[10]]: e(it)
    if rest: e('s_waitcnt lgkmcnt(0)')
    for i in rest:
        r = exdst(i); e(f's_add_u32 s44, s{sOB}, {(6-i)*43008}'); e(f'buffer_store_dwordx2 v[{r}:{r+1}], v{vOUT3}, s[{sO}:{sO+3}], s44 offen{nt}')
    exs = set(range(6)); exreg = {}
assert not pend and not q and (not EX or (len(exs) >= 6 and not exreg))
if not (EX and TM): stamp(); e('s_nop 7')
for it in (epi(6) if not (EX and TM) else []):
    if 'permlane16_swap_b32 v%d,' % CV in it: e('s_nop 0')
    e(it)
if STAMP:
    e('s_waitcnt vmcnt(0)')
    stamp()
    e('s_memrealtime s[82:83]')
    e('s_waitcnt lgkmcnt(0)')
    e(f's_cmp_lg_u32 s3, 0'); e('s_cbranch_scc1 L_end')
    e(f's_and_b32 s43, s2, 31'); e(f's_cmp_lg_u32 s43, 5'); e('s_cbranch_scc1 L_end')
    e(f's_lshr_b32 s43, s2, 5'); e(f's_lshl_b32 s43, s43, 5')
    assert nst[0] <= 7
    for k in range(1, nst[0]):
        e(f's_sub_u32 s44, s{sST+2*k}, s{sST}')
        e(f'v_mov_b32 v16, s44'); e('v_mov_b32 v17, 0')
        e(f'buffer_store_dword v16, v17, s[{sDBG}:{sDBG+3}], s43 offen offset:{4*(k-1)}')
    for k in range(2):
        e(f's_and_b32 s44, s{80+2*k}, 0xfffff')
        e(f'v_mov_b32 v16, s44'); e('v_mov_b32 v17, 0')
        e(f'buffer_store_dword v16, v17, s[{sDBG}:{sDBG+3}], s43 offen offset:{24+4*k}')
lab('L_end')
e('s_endpgm')
L.append(f".if (. - L_pc) < {opts['CST']*256}\n.fill ({opts['CST']*256} - (. - L_pc))/4, 4, 0xBF810000\n.endif")
L.append(f".if (L_end - L_pc) > {opts['CST']*256+64}\n.error \"code larger than prefetch range\"\n.endif")
LS = opts['LS']
if LS:
    si = [i for i, l in enumerate(L) if 'buffer_store' in l and ' sc1' in l]
    for i in si[-(LS % 10):]: L[i] = L[i].replace(' sc1', {0: '', 1: ' nt', 2: ' sc0 sc1', 3: ' nt sc1'}[LS // 10])
name = opts['name']
acc_off = (VEND + 3) // 4 * 4
hdr = f'''; circular 3x3 conv (== rfft2/irfft2 conv) as implicit GEMM on bf16 MFMA; generated by gen/gen5.py
; @launch grid=(224,1,1) block=(256,1,1) lds={LDS}
.amdgcn_target "amdgcn-amd-amdhsa--gfx950"
.text
.globl {name}_kernel
.p2align 8
.type {name}_kernel,@function
{name}_kernel:
'''
ftr = f'''.section .rodata,"a"
.p2align 6
.amdhsa_kernel {name}_kernel
  .amdhsa_next_free_vgpr {acc_off + 252}
  .amdhsa_next_free_sgpr 102
  .amdhsa_accum_offset {acc_off}
  .amdhsa_group_segment_fixed_size 0
  .amdhsa_kernarg_size 40
  .amdhsa_user_sgpr_count 2
  .amdhsa_user_sgpr_kernarg_segment_ptr 1
  .amdhsa_system_sgpr_workgroup_id_x 1
.end_amdhsa_kernel
'''
open(sys.argv[1], 'w').write(hdr + '\n'.join(L) + '\n' + ftr)
```

```python
import sys
opts = dict(STAMP=0, NT=0, SC=1, PRE=24, RATE=3, CPF=1, WPF=1, SW=1, XFIRST=1, B2=42, EDEL=9, XL=99, XROW=4096, CST=41, WLATE=1, TR=1, DW=3, HY=1, XG=5, CPOS=0, FAKE2=0, EX=1, TM=18, TD=5, LS=0, XPF=0, XPP=99, WPE=0, name='standalone__fft_conv__vision')
for a in sys.argv[2:]:
    k, v = a.split('=')
    opts[k] = int(v) if v.lstrip('-').isdigit() else v
STAMP = opts['STAMP']; SW = opts['SW']
L = []
def e(s): L.append('    ' + s)
def lab(s): L.append(s + ':')
XROW = opts['XROW']; XB = 0; WB = 16 * XROW; NSLOT = 8
LDS = WB + NSLOT * 12288
vXA = [1, 2, 3]; vWA = [4, 5, 6]; vWB_ = [7, 8, 9]; vGX = 10; vGW = [11, 12, 13]; vOUT = 14; vOUT2 = 15
ACC = 24; NACC = 5
XR = ACC + 12 * NACC; NXR = 2 * opts['DW'] + 2
CV = XR + 4 * NXR
WV = CV + 16
VEND = WV + 72
def wreg(s, t):
    if s < 21: return ('a', (s * 3 + t) * 4)
    return ('v', WV + ((s - 21) * 3 + t) * 4)
def rr(k, b, n): return f'{k}[{b}:{b+n-1}]'
sX = 8; sW = 12; sO = 16; sDBG = 20; sROW = 24
sXM = 40; sWM = 41; sOB = 42; sTMP = 43; sST = 48
nst = [0]
def stamp():
    if STAMP:
        e(f's_mem{"real" if STAMP==2 else ""}time s[{sST+2*nst[0]}:{sST+2*nst[0]+1}]'); nst[0] += 1
vm = []
def dmaW(r):
    so = f's{64 + r}' if r else '0'
    return [(('W', r), [f's_add_u32 m0, s{sWM}, {(r % NSLOT) * 12288}'] if i == 0 else [],
             f'buffer_load_dwordx4 v{vGW[i]}, s[{sW}:{sW+3}], {so} offen offset:{1024*i} lds') for i in range(3)]
def dmaX(rho):
    return [(('X', rho), [f's_add_u32 m0, s{sXM}, {XB + rho * XROW}'],
             f'buffer_load_dwordx4 v{vGX}, s[{sX}:{sX+3}], s{sROW+rho} offen lds')]
inited = set([('W', 0), ('X', 2)])
def sinit(t):
    if t in inited: return
    inited.add(t)
    if t[0] == 'W': e(f's_mov_b32 s{64 + t[1]}, {t[1] * 12288}')
    else: assert t[1] > 2; e(f's_add_u32 s{sROW+t[1]}, s{sROW+2}, {43008*(t[1]-2)}')
def emit(d):
    for p in d[1]: e(p)
    sinit(d[0])
    if L[-1].strip().startswith('s_add_u32 m0'): e('s_nop 0')
    vm.append(d[0]); e(d[2])
def vmcount(tags):
    idx = max(k for k, t in enumerate(vm) if t in tags)
    n = len(vm) - 1 - idx
    assert n < 64
    return n
def xp(r): return [x for o in (7, 0) for x in dmaX(r + o)] if r >= 2 else dmaX(r)
def xt(r): return [('X', r + 7), ('X', r)]
e(f's_load_dwordx2 s[{sX}:{sX+1}], s[0:1], 0')
e(f's_load_dwordx2 s[{sW}:{sW+1}], s[0:1], 8')
if STAMP: e('s_load_dwordx2 s[90:91], s[0:1], 24')
stamp()
if STAMP: e('s_memrealtime s[80:81]')
e('s_cmpk_ge_u32 s2, 224')
e('s_cbranch_scc1 L_end')
e('s_getpc_b64 s[88:89]')
lab('L_pc')
e(f"v_mul_u32_u24 v22, {opts['CST']}, v0")
e('global_load_dword v23, v22, s[88:89]'); vm.append(('C', 0))
e('v_readfirstlane_b32 s3, v0')
e('s_lshr_b32 s45, s2, 3')
e('s_and_b32 s43, s2, 7')
e('s_cmp_ge_u32 s45, 14')
e('s_cselect_b32 s44, 14, 0')
e('s_sub_u32 s47, s45, s44')
e('s_mul_i32 s46, s43, 28')
e('s_add_u32 s46, s46, s44')
e('s_mulk_i32 s47, 3072')
e('s_addk_i32 s47, -384')
if XROW == 4096:
    e(f's_lshl_b32 s{sXM}, s3, 4')
    u = 'v0'
else:
    e('s_min_u32 s44, s3, 152')
    e(f's_lshl_b32 s{sXM}, s44, 4')
    e('s_sub_u32 s44, s44, s3')
    e('v_add_u32 v18, s44, v0')
    u = 'v18'
e(f'v_lshrrev_b32 v17, 4, {u}')
e('v_mul_u32_u24 v17, 43, v17')
e('v_lshrrev_b32 v17, 6, v17')
e('v_and_b32 v17, 2, v17')
e(f'v_xor_b32 v16, {u}, v17')
e('v_lshl_add_u32 v16, v16, 4, s47')
e('v_add_u32 v17, 43008, v16')
e(f'v_min_u32 v{vGX}, v16, v17')
e(f's_mul_i32 s{sROW+2}, s46, 43008')
e(f's_mov_b32 s{sX+2}, 9633792'); e(f's_mov_b32 s{sX+3}, 0x20000')
def wsetup():
    e(f's_load_dwordx2 s[{sO}:{sO+1}], s[0:1], 16')
    e('v_and_b32 v0, 63, v0')
    e(f'v_lshlrev_b32 v16, 4, v0')
    e(f'v_and_b32 v17, 32, v0')
    e('s_mul_i32 s44, s3, 48')
    e(f's_add_u32 s{sWM}, s44, {WB}')
    e(f'v_add_u32 v{vGW[0]}, s44, v16')
    e(f'v_xor_b32 v{vGW[2]}, 32, v{vGW[0]}')
    e(f'v_xor_b32 v{vGW[1]}, v17, v{vGW[0]}')
    if not opts['WPE']: e(f's_mov_b32 s{sW+2}, 165888'); e(f's_mov_b32 s{sW+3}, s{sX+3}')
def wpfsetup():
    e('s_mulk_i32 s45, 47*128')
    e('s_mul_i32 s44, s3, 24')
    e('s_add_u32 s45, s45, s44')
    if opts['WPE']: e('v_and_b32 v21, 63, v0'); e('v_min_u32 v21, 11, v21')
    else: e('v_min_u32 v21, 11, v0')
    e('v_lshl_add_u32 v21, v21, 7, s45')
def wpfload(): e(f'buffer_load_dword v23, v21, s[{sW}:{sW+3}], 0 offen'); vm.append(('P', 0))
if opts['WPE']: wpfsetup(); e(f's_mov_b32 s{sW+2}, 165888'); e(f's_mov_b32 s{sW+3}, s{sX+3}')
e('s_waitcnt lgkmcnt(0)')
if opts['WPE'] == 1: wpfload()
if STAMP >= 3: stamp()
if opts['HY']:
    q = xp(8) + xp(7) + dmaW(0) + dmaW(1) + dmaW(2) + dmaW(3) + xp(6) + dmaW(4) + dmaW(5) + dmaW(6) + dmaW(7) + xp(5)
    for r in range(8, 14): q += dmaW(r)
    for r in range(4, -1, -1): q += xp(r)
else:
    q = xp(8) + dmaW(0) + dmaW(1) + dmaW(2) + dmaW(3) + xp(7) + dmaW(4) + dmaW(5) + dmaW(6) + dmaW(7) + xp(6)
    for r in range(8, 14): q += dmaW(r)
    for r in range(5, -1, -1): q += xp(r)
N0 = 7 if opts['HY'] else 5
for n_, d in enumerate(q[:N0 - 3]):
    emit(d)
    if (opts['WPE'] == 2 and n_ == N0 - 4) or (opts['WPE'] == 3 and n_ == 1): wpfload()
wsetup()
for d in q[N0 - 3:N0]: emit(d)

if opts['WPF'] and not opts['WPE']:
    wpfsetup()
    e(f'buffer_load_dword v23, v21, s[{sW}:{sW+3}], 0 offen'); vm.append(('P', 0))
def xpf():
    e('v_and_b32 v21, 31, v0'); e('v_min_u32 v21, 26, v21'); e('v_lshl_add_u32 v21, v21, 7, s47')
    e('v_add_u32 v22, 43008, v21'); e('v_min_u32 v21, v21, v22')
    e('v_lshrrev_b32 v22, 5, v0'); e('v_mul_u32_u24 v22, 43008, v22'); e('v_add_u32 v22, v21, v22')
    e('s_bfe_u32 s44, s3, 0x10006'); e('s_mul_i32 s44, s44, 86016')
    e('s_lshr_b32 s45, s3, 7'); e('s_mul_i32 s45, s45, 301056')
    e('s_add_u32 s44, s44, s45'); e(f's_add_u32 s44, s44, s{sROW+2}')
    e(f'buffer_load_dword v23, v22, s[{sX}:{sX+3}], s44 offen'); vm.append(('P', 0))
for n_, d in enumerate(q[N0:opts['PRE']]):
    if opts['XPF'] and n_ + N0 == opts['XPP']: xpf()
    emit(d)
if opts['XPF'] and opts['XPP'] >= opts['PRE']: xpf()
q = q[opts['PRE']:]
for r in range(1, 14): sinit(('W', r))
for r in range(3, 16): sinit(('X', r))
inited.add(('X', 0)); inited.add(('X', 1))
e(f's_add_u32 s45, s46, 222')
e(f's_cmp_ge_u32 s45, 224')
e(f's_cselect_b32 s44, 224, 0')
e(f's_sub_u32 s45, s45, s44')
e(f's_mul_i32 s{sROW}, s45, 43008')
e(f's_add_u32 s{sROW+1}, s{sROW}, 43008')
if opts['XPF'] == 2: e(f'buffer_load_dword v23, v22, s[{sX}:{sX+3}], s{sROW} offen'); vm.append(('P', 0))
if STAMP:
    e(f's_mov_b32 s{sDBG}, s90'); e(f's_and_b32 s{sDBG+1}, s91, 0xffff'); e(f's_mov_b32 s{sDBG+2}, 256'); e(f's_mov_b32 s{sDBG+3}, 0x20000')
e(f's_mov_b32 s{sO+2}, s{sX+2}'); e(f's_mov_b32 s{sO+3}, s{sX+3}')
e('s_lshr_b32 s3, s3, 6')
e('s_addk_i32 s47, 384')
e('v_and_b32 v16, 15, v0')
e('v_lshrrev_b32 v17, 4, v0')
e('s_lshr_b32 s86, s3, 1')
e('s_and_b32 s45, s3, 1')
e(f's_xor_b32 s43, s86, 1')
e(f's_mul_i32 s87, s43, 7')
e(f's_mul_i32 s43, s87, {XROW}')
for kw in range(3):
    e(f'v_add_u32 v18, {2-kw}, v16')
    e('v_lshrrev_b32 v19, 1, v18')
    e('v_and_b32 v19, 2, v19')
    e('v_xor_b32 v19, v19, v17')
    e('v_mul_u32_u24 v18, 192, v18')
    e('v_lshl_add_u32 v18, v19, 4, v18')
    e(f'v_add_u32 v{vXA[kw]}, s43, v18')
e('v_lshrrev_b32 v18, 2, v16')
e('v_lshl_add_u32 v18, v17, 3, v18')
e('v_mul_u32_u24 v18, 192, v18')
e(f'v_add_u32 v18, {WB}, v18')
e('v_and_b32 v19, 3, v0')
e('v_and_b32 v20, 1, v17')
e('v_lshlrev_b32 v20, 5, v20')
if SW:
    e('s_lshl_b32 s43, s45, 7')
    e('s_lshl_b32 s44, s45, 5')
    e('s_add_u32 s44, s44, 64')
    e('v_lshlrev_b32 v19, 3, v19')
    for t in range(3):
        if t < 2: e(f'v_add3_u32 v21, v19, {32*t}, s43')
        else: e('v_add_u32 v21, s44, v19')
        e('v_xor_b32 v21, v21, v20')
        e(f'v_add_u32 v{vWA[t]}, v21, v18')
        e(f'v_add_u32 v{vWB_[t]}, 61440, v{vWA[t]}')
    e('v_mul_u32_u24 v18, 192, v16')
    e('v_lshrrev_b32 v19, 1, v17')
    e('v_lshl_add_u32 v19, v19, 4, v20')
    e(f'v_add3_u32 v{vOUT}, v18, v19, s43')
    e('v_lshl_add_u32 v18, v17, 3, v18')
    e(f'v_add_u32 v{vOUT2}, s44, v18')
    if opts['FAKE2']:
        e('v_and_b32 v18, 14, v16'); e('v_add_u32 v18, s45, v18'); e('v_mul_u32_u24 v18, 192, v18')
        e('v_and_b32 v19, 1, v16'); e('v_lshlrev_b32 v19, 5, v19'); e('v_lshl_add_u32 v19, v17, 3, v19')
        e(f'v_add3_u32 v{vOUT2}, v18, v19, 64')
    if opts['FAKE2'] == 2:
        e('s_lshl_b32 s43, s45, 10'); e(f'v_lshl_add_u32 v{vOUT}, v0, 4, s43')
        e('s_lshl_b32 s43, s45, 9'); e('s_add_u32 s43, s43, 2048'); e(f'v_lshl_add_u32 v{vOUT2}, v0, 3, s43')
else:
    e('v_mul_u32_u24 v19, 24, v19')
    e('s_mul_i32 s43, s45, 96')
    e('v_add_u32 v19, s43, v19')
    for t in range(3):
        e(f'v_add_u32 v21, {8*t}, v19')
        e('v_xor_b32 v21, v21, v20')
        e(f'v_add_u32 v{vWA[t]}, v21, v18')
        e(f'v_add_u32 v{vWB_[t]}, 61440, v{vWA[t]}')
    e('v_mul_u32_u24 v18, 192, v16')
    e('v_mul_u32_u24 v19, 24, v17')
    e(f'v_add3_u32 v{vOUT}, v18, v19, s43')
    e(f'v_add_u32 v{vOUT2}, 16, v{vOUT}')
EX = opts['EX']; vOUT3 = 18; vER = 19; vEW = 20; EB = WB + 6 * 12288
if EX:
    e('v_and_b32 v21, 14, v16'); e('v_add_u32 v21, s45, v21')
    e('v_and_b32 v22, 1, v16')
    e('v_mul_u32_u24 v18, 192, v21'); e('v_lshl_add_u32 v18, v22, 5, v18'); e('v_lshl_add_u32 v18, v17, 3, v18')
    e(f'v_add_u32 v{vOUT3}, 64, v18')
    e('s_mul_i32 s43, s86, 1040'); e(f's_add_u32 s43, s43, {EB}')
    e('v_lshl_add_u32 v21, v17, 4, v21'); e('v_mul_u32_u24 v22, 520, v22')
    e('v_lshl_add_u32 v21, v21, 3, v22'); e(f'v_add_u32 v{vER}, s43, v21')
    e('s_mul_i32 s44, s45, 520'); e('s_add_u32 s43, s43, s44')
    e(f'v_lshl_add_u32 v{vEW}, v0, 3, s43')
e('s_add_u32 s43, s46, s87')
e('s_mul_i32 s43, s43, 43008')
e(f's_add_u32 s{sOB}, s43, s47')
F = []
HY = opts['HY']
def alluses(row): return [(8 - row - kh, kh) for kh in range(3) if 0 <= 8 - row - kh <= 6]
fidx = 0
for st in range(9 if not HY else 8):
    for kw in range(3):
        for j in range(3):
            if HY and st < 3:
                fr = [(7 - st, [u for u in alluses(7 - st) if u[1] <= st]), (8 - st, [(0, st)])]
            else:
                row = 8 - st - (1 if HY else 0); fr = [(row, alluses(row))]
            F.append([(row, kw, j, uses, fidx + n) for n, (row, uses) in enumerate(fr)]); fidx += len(fr)
if opts['TR']:
    G = []; tail = []; tail2 = []; TM = opts['TM'] if EX else 0
    for fr in F:
        (row, kw, j, uses, fi) = fr[0]
        if len(fr) == 1 and row <= 2:
            u = [x for x in uses if x[0] != 6]
            u6 = [x for x in uses if x[0] == 6]
            if len(tail2) < TM:
                u = u + [u6[0] + ((2,),)]; tail2.append([(row, kw, j, [u6[0] + ((0, 1),)], 0)])
            else: tail.append([(row, kw, j, u6, 0)])
            if u: G.append([(row, kw, j, u, 0)])
        else: G.append(fr)
    F = []; fidx = 0
    for fr in G + tail + tail2:
        F.append([f[:4] + (fidx + n,) for n, f in enumerate(fr)]); fidx += len(fr)
NF = len(F)
def rowsof(k): return [t for f in F[k] for t in xt(f[0])]
ds = []
def reads(k):
    out = []
    for (row, kw, j, _, fi) in F[k]:
        reg = XR + 4 * (fi % NXR)
        out.append((k, f'ds_read_b128 v[{reg}:{reg+3}], v{vXA[kw]} offset:{XB + row * XROW + j * 64}'))
    if k <= 26:
        slot = k % (2 * NSLOT)
        for t in range(3):
            kk, b = wreg(k, t)
            for h in range(2):
                off = slot * 6144 + h * 768; a = vWA[t]
                if slot >= 10: off -= 61440; a = vWB_[t]
                out.append((k, f'ds_read_b64_tr_b16 {rr(kk, b+2*h, 2)}, v{a} offset:{off}'))
    return out
def eds(r): ds.append(r[0]); e(r[1])
nt = (' nt' if opts['NT'] else '') + (' sc1' if opts['SC'] & 1 else '') + (' sc0' if opts['SC'] & 2 else '')
def epi(tile):
    acc = ACC + 12 * (tile % NACC); c = CV + 8 * (tile % 2)
    out = []
    for t in range(3):
        out.append(f'v_cvt_pk_bf16_f32 v{c+2*t}, v{acc+4*t}, v{acc+4*t+1}')
        out.append(f'v_cvt_pk_bf16_f32 v{c+2*t+1}, v{acc+4*t+2}, v{acc+4*t+3}')
    out.append(f's_add_u32 s{sTMP}, s{sOB}, {(6-tile)*43008}')
    st4 = f'buffer_store_dwordx4 v[{c}:{c+3}], v{vOUT}, s[{sO}:{sO+3}], s{sTMP} offen{nt}'
    st2 = f'buffer_store_dwordx2 v[{c+4}:{c+5}], v{vOUT2}, s[{sO}:{sO+3}], s{sTMP} offen{nt}'
    if EX and tile < 6:
        out += [f'ds_write_b64 v{vEW}, v[{c+4}:{c+5}] offset:{tile*2080}', f'v_permlane16_swap_b32 v{c}, v{c+2}', f'v_permlane16_swap_b32 v{c+1}, v{c+3}', st4]
    elif SW: out += [f'v_permlane16_swap_b32 v{c}, v{c+2}', f'v_permlane16_swap_b32 v{c+1}, v{c+3}', st2, st4]
    else: out += [st4, st2]
    return out
covered = set()
def barrier(need, lg=None):
    global q
    need = [t for t in need if t not in covered]
    while not all(vm.count(t) == (3 if t[0] == 'W' else 1) for t in need):
        print('forced', q[0][0], file=sys.stderr); emit(q.pop(0)); pre_done[0] = False
    n = vmcount(need)
    for t in vm[:len(vm) - n]: covered.add(t)
    e(f's_waitcnt vmcnt({n})' + (f' lgkmcnt({lg})' if lg is not None else ''))
    e('s_barrier')
pre_done = [False]
e('s_waitcnt lgkmcnt(0)')
DW = opts['DW']
barrier([('W', r) for r in range((DW + 1) // 2)] + rowsof(0))
stamp()
for kk in range(DW):
    for r in reads(kk): eds(r)
nextrd = DW
pend = []; delay = 0; cnt = {}; done = set(); gap_since = [0]
B2 = opts['B2']
exb = set(); exs = set(); exreg = {}
def exdst(i):
    p = EX - 1 - i % EX
    if i == 6: return CV + 4
    if EX == 1: return CV + 8 * (i % 2) + 6
    return CV + 8 * (i % 2) + 4 if p == 0 else (CV + 14 if p == 1 else CV + 6)
for k, frs in enumerate(F):
    if k == 27 or (STAMP == 1 and k in (9, 18)): stamp()
    idx = max(i for i, t in enumerate(ds) if t == k)
    lg = min(15, len(ds) - 1 - idx)
    if (k + DW) % 2 == 0 and k + DW <= 26:
        need = [('W', (k + DW) // 2)] + rowsof(k + DW + 1)
        barrier(need, lg)
    elif k + DW > 26 and k + 3 < NF and any(t not in covered for t in rowsof(k + 3)):
        r0 = F[k + 3][0][0]
        barrier([t for r in range(max(0, r0 - opts['XG'] + 1), r0 + 1) for t in xt(r)], lg)
    else: e(f's_waitcnt lgkmcnt({lg})')
    if EX:
        for i in range(7):
            if ('ER', i) in ds[:idx + 1] and i not in exs:
                exs.add(i); r = exdst(i)
                pend += [f's_add_u32 s44, s{sOB}, {(6-i)*43008}', f'buffer_store_dwordx2 v[{r}:{r+1}], v{vOUT3}, s[{sO}:{sO+3}], s44 offen{nt}']
        for i in list(range(EX - 1, 6, EX)) + [6]:
            if ('EW', i) in ds[:idx + 1] and i not in exb:
                exb.add(i)
                if L[-1].strip() != 's_barrier': e('s_barrier')
                for i2 in (range(i - EX + 1, i + 1) if i < 6 else [6]):
                    r = exdst(i2); assert r not in exreg; exreg[r] = i2
                    pend.append(f'ds_read_b64 v[{r}:{r+1}], v{vER} offset:{i2*2080}')
    D = DW if k < 26 else 3
    rd = []
    while nextrd <= min(k + D, NF - 1):
        for t in rowsof(nextrd): assert t in covered, (k, t)
        rd += reads(nextrd); nextrd += 1
    ms = []
    for (row, kw, j, uses, fi) in frs:
        for u_ in uses:
            i, kh = u_[:2]
            for t in (u_[2] if len(u_) > 2 else range(3)):
                acc = ACC + 12 * (i % NACC) + 4 * t
                kk, b = wreg(kh * 9 + kw * 3 + j, t)
                c = f'v[{acc}:{acc+3}]' if cnt.get((i, t), 0) else '0'
                if not cnt.get((i, t), 0): assert not any(f'v{acc},' in p for p in pend)
                x = XR + 4 * (fi % NXR)
                ms.append(f'v_mfma_f32_16x16x32_bf16 v[{acc}:{acc+3}], {rr(kk,b,4)}, v[{x}:{x+3}], {c}')
                cnt[(i, t)] = cnt.get((i, t), 0) + 1
    ndma = opts['RATE']
    per = -(-len(rd) // len(ms))
    for mi, m in enumerate(ms):
        e(m); gap_since[0] += 1
        used = 0
        while rd and used < per: eds(rd.pop(0)); used += 1
        last = mi == len(ms) - 1
        while used < (1 if last else 2) or (last and len(ms) == 3 and q and ndma):
            ok = q and ndma and not (q[0][0][0] == 'X' and q[0][0] not in [t for kk in range(k, min(NF, k + opts['XL'])) for t in rowsof(kk)]) and not (q[0][0][0] == 'W' and q[0][0][1] >= NSLOT and k < 2 * (q[0][0][1] - NSLOT) + 2 + DW % 2 - (DW // 2 - 1) * 0)
            if ok and (len(ms) <= 6 or mi % 2 == 0 or pre_done[0]):
                if q[0][1] and not pre_done[0]:
                    e(q[0][1][0]); pre_done[0] = True; used += 1
                    if not (last and len(ms) == 3): break
                else:
                    d = q.pop(0); emit((d[0], [], d[2])); pre_done[0] = False; ndma -= 1; used += 1
                    if len(ms) > 3: break
            elif pend:
                it = pend.pop(0)
                if it[0] == '@':
                    if gap_since[0] < int(it[1:]): pend.insert(0, it); break
                    it = pend.pop(0)
                e(it); used += 1
                if 'store' in it: vm.append(('S', 0))
                if it.startswith('ds_write'): ds.append(('EW', int(it.split(':')[-1]) // 2080))
                if it.startswith('ds_read'): ds.append(('ER', int(it.split(':')[-1]) // 2080))
                if f'v{vOUT3},' in it: del exreg[int(it.split('[')[1].split(':')[0])]
                if it.startswith('v_cvt'): assert int(it.split()[1][1:-1]) & ~1 not in exreg, it
                break
            else: break
    for i in range(6):
        if cnt.get((i, 0), 0) == 27 and i not in done:
            if not any(p.startswith('v_cvt') or True for p in pend): delay = opts['EDEL']
            else: delay = max(delay, 1)
            pend += ['@9'] + epi(i); done.add(i); gap_since[0] = 0
    if EX and TM and cnt.get((6, 2), 0) == 27 and 6 not in done:
        ep = epi(6); done.add(6); gap_since[0] = 0
        pend += [f"@{opts['TD']}", ep[4], ep[5], f'ds_write_b64 v{vEW}, v[{CV+4}:{CV+5}] offset:{6*2080}']
assert not q and (TM and EX or not pend)
for it in pend:
    assert 'v_cvt' not in it and it[0] != '@' and not it.startswith('ds_write'), it
    e(it)
    if it.startswith('ds_read'): ds.append(('ER', int(it.split(':')[-1]) // 2080))
    if f'v{vOUT3},' in it: del exreg[int(it.split('[')[1].split(':')[0])]
pend = []
if EX and TM:
    if 6 not in exb:
        e('s_waitcnt lgkmcnt(0)'); e('s_barrier'); e(f'ds_read_b64 v[{CV+4}:{CV+5}], v{vER} offset:{6*2080}')
    rest = [i for i in range(7) if i not in exs]
    print('leftover', rest, 6 in exb, file=sys.stderr)
    stamp(); e('s_nop 7')
    ep = epi(6)
    for it in ep[0:2] + ['s_nop 0'] + ep[2:4] + [ep[6], 's_nop 0'] + ep[7:9] + [ep[10]]: e(it)
    if rest: e('s_waitcnt lgkmcnt(0)')
    for i in rest:
        r = exdst(i); e(f's_add_u32 s44, s{sOB}, {(6-i)*43008}'); e(f'buffer_store_dwordx2 v[{r}:{r+1}], v{vOUT3}, s[{sO}:{sO+3}], s44 offen{nt}')
    exs = set(range(6)); exreg = {}
assert not pend and not q and (not EX or (len(exs) >= 6 and not exreg))
if not (EX and TM): stamp(); e('s_nop 7')
for it in (epi(6) if not (EX and TM) else []):
    if 'permlane16_swap_b32 v%d,' % CV in it: e('s_nop 0')
    e(it)
if STAMP:
    e('s_waitcnt vmcnt(0)')
    stamp()
    e('s_memrealtime s[82:83]')
    e('s_waitcnt lgkmcnt(0)')
    e(f's_cmp_lg_u32 s3, 0'); e('s_cbranch_scc1 L_end')
    e(f's_and_b32 s43, s2, 31'); e(f's_cmp_lg_u32 s43, 5'); e('s_cbranch_scc1 L_end')
    e(f's_lshr_b32 s43, s2, 5'); e(f's_lshl_b32 s43, s43, 5')
    assert nst[0] <= 7
    for k in range(1, nst[0]):
        e(f's_sub_u32 s44, s{sST+2*k}, s{sST}')
        e(f'v_mov_b32 v16, s44'); e('v_mov_b32 v17, 0')
        e(f'buffer_store_dword v16, v17, s[{sDBG}:{sDBG+3}], s43 offen offset:{4*(k-1)}')
    for k in range(2):
        e(f's_and_b32 s44, s{80+2*k}, 0xfffff')
        e(f'v_mov_b32 v16, s44'); e('v_mov_b32 v17, 0')
        e(f'buffer_store_dword v16, v17, s[{sDBG}:{sDBG+3}], s43 offen offset:{24+4*k}')
lab('L_end')
e('s_endpgm')
L.append(f".if (. - L_pc) < {opts['CST']*256}\n.fill ({opts['CST']*256} - (. - L_pc))/4, 4, 0xBF810000\n.endif")
L.append(f".if (L_end - L_pc) > {opts['CST']*256+64}\n.error \"code larger than prefetch range\"\n.endif")
LS = opts['LS']
if LS:
    si = [i for i, l in enumerate(L) if 'buffer_store' in l and ' sc1' in l]
    for i in si[-(LS % 10):]: L[i] = L[i].replace(' sc1', {0: '', 1: ' nt', 2: ' sc0 sc1', 3: ' nt sc1'}[LS // 10])
name = opts['name']
acc_off = (VEND + 3) // 4 * 4
hdr = f'''; circular 3x3 conv (== rfft2/irfft2 conv) as implicit GEMM on bf16 MFMA; generated by gen/gen5.py
; @launch grid=(224,1,1) block=(256,1,1) lds={LDS}
.amdgcn_target "amdgcn-amd-amdhsa--gfx950"
.text
.globl {name}_kernel
.p2align 8
.type {name}_kernel,@function
{name}_kernel:
'''
ftr = f'''.section .rodata,"a"
.p2align 6
.amdhsa_kernel {name}_kernel
  .amdhsa_next_free_vgpr {acc_off + 252}
  .amdhsa_next_free_sgpr 102
  .amdhsa_accum_offset {acc_off}
  .amdhsa_group_segment_fixed_size 0
  .amdhsa_kernarg_size 40
  .amdhsa_user_sgpr_count 2
  .amdhsa_user_sgpr_kernarg_segment_ptr 1
  .amdhsa_system_sgpr_workgroup_id_x 1
.end_amdhsa_kernel
'''
open(sys.argv[1], 'w').write(hdr + '\n'.join(L) + '\n' + ftr)
```
